```python
import torch

def _softmax(x, axis=-1):
    return torch.softmax(x, dim=axis)
def _gelu(x):
    return torch.nn.functional.gelu(x, approximate="tanh")
def _silu(x):
    return torch.nn.functional.silu(x)
def _sigmoid(x):
    return torch.sigmoid(x)
def _layernorm(x, axis=-1, eps=1e-5):
    m = x.mean(dim=axis, keepdim=True)
    v = x.var(dim=axis, keepdim=True, unbiased=False)
    return (x - m) / torch.sqrt(v + eps)
def _scatter_add(tgt, idx, src, axis=0):
    return tgt.clone().index_add_(axis, idx, src)
def _segment_sum(src, seg, n):
    out = torch.zeros((n,) + src.shape[1:], dtype=src.dtype)
    return out.index_add_(0, seg, src)
def _pad(x, pw):
    flat = tuple(v for pair in reversed(pw) for v in pair)
    return torch.nn.functional.pad(x, flat)

kernel_name = 'concat_heads__spectral_gfnet__ssm_conv_s4__prompt'

def setup_inputs():

    _w = (lambda a: (lambda t: t.to(torch.bfloat16) if t.is_floating_point() else t)(torch.as_tensor(a)))
    def _A_setup():
        B, S, D = 1, 2048, 640
        Df = D // 2 + 1
        return {
            "x": _w((lambda *s: torch.randn(*s, dtype=torch.bfloat16) * 0.05)(B, S, D)),
            "w_r": _w((lambda *s: torch.randn(*s, dtype=torch.bfloat16) * 0.8)(S, Df) * 0.02),
            "w_i": _w((lambda *s: torch.randn(*s, dtype=torch.bfloat16) * 1.6)(S, Df) * 0.02),
        }
    _A_in = _A_setup()

    def _B_setup():
        B, L, D, N = 1, 2048, 640, 128
        A_re = -(lambda _x: torch.exp(torch.as_tensor(_x)))((lambda *s: torch.randn(*s, dtype=torch.bfloat16) * 3.2)(D, N))
        A_im = torch.pi * (lambda *s: torch.randn(*s, dtype=torch.bfloat16) * 0.05)(D, N)
        B_re = (lambda *s: torch.randn(*s, dtype=torch.bfloat16) * 0.1)(D, N)
        B_im = (lambda *s: torch.randn(*s, dtype=torch.bfloat16) * 0.1)(D, N)
        C_re = (lambda *s: torch.randn(*s, dtype=torch.bfloat16) * 0.1)(D, N)
        C_im = (lambda *s: torch.randn(*s, dtype=torch.bfloat16) * 0.1)(D, N)
        log_dt = (lambda *s: torch.randn(*s, dtype=torch.bfloat16) * 0.05)(D) * 0.5 - 4.0
        Dskip = (lambda *s: torch.randn(*s, dtype=torch.bfloat16) * 0.05)(D)
        return {
            "u": _w((lambda *s: torch.randn(*s, dtype=torch.bfloat16) * 0.05)(B, L, D)),
            "A_re": _w(A_re),
            "A_im": _w(A_im),
            "B_re": _w(B_re),
            "B_im": _w(B_im),
            "C_re": _w(C_re),
            "C_im": _w(C_im),
            "log_dt": _w(log_dt),
            "Dskip": _w(Dskip),
        }
    _B_in = _B_setup()

    return {
        "A_x": _A_in["x"],
        "A_w_r": _A_in["w_r"],
        "A_w_i": _A_in["w_i"],
        "B_u": _B_in["u"],
        "B_A_re": _B_in["A_re"],
        "B_A_im": _B_in["A_im"],
        "B_B_re": _B_in["B_re"],
        "B_B_im": _B_in["B_im"],
        "B_C_re": _B_in["C_re"],
        "B_C_im": _B_in["C_im"],
        "B_log_dt": _B_in["log_dt"],
        "B_Dskip": _B_in["Dskip"],
    }

def reference(A_x, A_w_r, A_w_i, B_u, B_A_re, B_A_im, B_B_re, B_B_im, B_C_re, B_C_im, B_log_dt, B_Dskip):
    def _A_ref(x, w_r, w_i):
        B, S, D = x.shape
        X = (lambda x, axes=(-2,-1): torch.fft.rfft2(x.float(), dim=axes))(x, axes=(-2, -1))
        W = w_r + 1j * w_i
        X = X * W
        y = (lambda x, s, axes=(-2,-1): torch.fft.irfft2(x, s=s, dim=axes).to(torch.bfloat16))(X, (S, D), axes=(-2, -1))
        return y

    def _B_ref(u, A_re, A_im, B_re, B_im, C_re, C_im, log_dt, Dskip):
        Bsz, L, D = u.shape
        dt = torch.exp(log_dt)[:, None]
        A = A_re + 1j * A_im
        Bc = B_re + 1j * B_im
        Cc = C_re + 1j * C_im
        logdA = dt * A
        dB = dt * Bc
        l = (lambda x, dt: x.to(dt))(torch.arange(L), A_re.dtype)
        P = torch.exp(logdA[:, :, None] * l[None, None, :])
        K = torch.einsum("dn,dnl,dn->dl", Cc, P, dB).real
        L2 = 2 * L
        Kp = _pad(K, ((0, 0), (0, L)))
        up = (lambda x, *d: x.permute(*d))(u, 0, 2, 1)
        up = _pad(up, ((0, 0), (0, 0), (0, L)))
        Kf = (lambda x, axes=(-2,-1): torch.fft.rfft2(x.float(), dim=axes))(Kp[:, None, :], axes=(-2, -1))
        Uf = (lambda x, axes=(-2,-1): torch.fft.rfft2(x.float(), dim=axes))(up[:, :, None, :], axes=(-2, -1))
        Yf = Uf * Kf[None, :, :, :]
        y = (lambda x, s, axes=(-2,-1): torch.fft.irfft2(x, s=s, dim=axes).to(torch.bfloat16))(Yf, (1, L2), axes=(-2, -1))[:, :, 0, :L]
        y = (lambda x, *d: x.permute(*d))(y, 0, 2, 1) + u * Dskip[None, None, :]
        return y

    a = _A_ref(A_x, A_w_r, A_w_i)
    b = _B_ref(B_u, B_A_re, B_A_im, B_B_re, B_B_im, B_C_re, B_C_im, B_log_dt, B_Dskip)
    return torch.concatenate([a, b], axis=-1)
```

```python
import re

REG = re.compile(r"^(-|abs\()?([vsa])(\d+|\[(\d+):(\d+)\])\)?$")

def regs_of(tok):
    tok = tok.strip()
    if tok in ("vcc",):
        return [("s", 106), ("s", 107)]
    if tok == "vcc_lo": return [("s", 106)]
    if tok == "vcc_hi": return [("s", 107)]
    if tok == "exec": return [("x", 0)]
    if tok == "m0": return [("m", 0)]
    m = REG.match(tok)
    if not m:
        return []
    k = m.group(2)
    if m.group(4) is not None:
        return [(k, i) for i in range(int(m.group(4)), int(m.group(5)) + 1)]
    return [(k, int(m.group(3)))]

TRANS = ("v_exp_f32", "v_log_f32", "v_rcp_f32", "v_rsq_f32", "v_sqrt_f32", "v_sin_f32", "v_cos_f32")

class Ins:
    def __init__(self, text):
        self.text = text.strip()
        t = self.text.split(";")[0].strip()
        parts = t.split(None, 1)
        self.op = parts[0]
        rest = parts[1] if len(parts) > 1 else ""
        rest2 = re.sub(r"\b(op_sel|op_sel_hi|neg_lo|neg_hi|quad_perm):\[[^\]]*\]", "", rest)
        toks = [x.strip() for x in rest2.split(",")] if rest2.strip() else []
        ops = []
        for x in toks:
            ops.append(x.split()[0] if x.split() else "")
        self.mods = rest
        self.ops = ops
        self.classify()

    def classify(self):
        op, o = self.op, self.ops
        R = lambda i: regs_of(o[i]) if i < len(o) else []
        self.w = []; self.r = []
        self.kind = "other"
        self.mem = None
        self.loaddst = []
        if op.startswith("v_mfma"):
            self.kind = "mfma"
            self.w = R(0); self.ra = R(1) + R(2); self.rc = R(3); self.r = self.ra + self.rc
            self.passes = 8 if "32x32" in op else 4
        elif op.startswith("v_"):
            self.kind = "trans" if op.replace("_e32", "").replace("_e64", "") in TRANS else "valu"
            if op.startswith(("v_swap", "v_permlane16_swap", "v_permlane32_swap")):
                self.w = R(0) + R(1); self.r = R(0) + R(1)
            elif op.startswith(("v_add_co", "v_sub_co", "v_addc_co", "v_subb_co")):
                self.w = R(0) + R(1); self.r = sum((R(i) for i in range(2, len(o))), [])
            else:
                self.w = R(0); self.r = sum((R(i) for i in range(1, len(o))), [])
                if op.startswith(("v_fmac", "v_pk_fmac", "v_writelane", "v_mac")) or "dpp" in op or "row_" in self.mods or "quad_perm" in self.mods:
                    self.r += R(0)
                if op.startswith("v_cndmask") and len(o) == 3:
                    self.r += regs_of("vcc")
            if op.startswith("v_cmpx"):
                raise ValueError("v_cmpx unsupported")
        elif op.startswith("ds_"):
            self.kind = "ds"; self.mem = "lgkm"
            if op.startswith(("ds_read", "ds_bpermute", "ds_permute", "ds_swizzle")):
                self.loaddst = R(0); self.w = R(0)
                self.r = sum((R(i) for i in range(1, len(o))), [])
                if "d16" in op: self.r += R(0)
            else:
                self.r = sum((R(i) for i in range(len(o))), [])
        elif op.startswith(("buffer_", "global_")):
            self.kind = "vmem"; self.mem = "vm"
            if op in ("buffer_wbl2", "buffer_inv"):
                pass
            elif "_load" in op:
                if re.search(r"\blds\b", self.mods) or "load_lds" in op:
                    self.r = sum((R(i) for i in range(len(o))), []) + [("m", 0)]
                else:
                    self.loaddst = R(0); self.w = R(0)
                    self.r = sum((R(i) for i in range(1, len(o))), [])
                    if "d16" in op: self.r += R(0)
            else:
                self.r = sum((R(i) for i in range(len(o))), [])
                if op.startswith("buffer_store"): self.sdata = R(0)
                else: self.sdata = R(1)
                if "atomic" in op and "sc0" in self.mods:
                    self.loaddst = self.sdata if op.startswith("buffer") else R(0); self.w = self.loaddst
        elif op.startswith(("s_load", "s_memtime", "s_memrealtime", "s_buffer_load")):
            self.kind = "smem"; self.mem = "lgkm"
            self.loaddst = R(0); self.w = R(0); self.r = sum((R(i) for i in range(1, len(o))), [])
        elif op.startswith("s_"):
            self.kind = "salu"
            if op.startswith(("s_cmp", "s_bitcmp", "s_cbranch", "s_branch", "s_waitcnt", "s_nop", "s_barrier", "s_sleep", "s_setprio", "s_endpgm", "s_setreg")):
                self.r = sum((R(i) for i in range(len(o))), [])
                if "vcc" in op: self.r += regs_of("vcc")
            else:
                self.w = R(0); self.r = sum((R(i) for i in range(1, len(o))), [])
                if "saveexec" in op: self.w += [("x", 0)]
                if op.startswith(("s_addk", "s_mulk")): self.r += R(0)

class Emitter:
    def __init__(self):
        self.out = []
        self.snap = {}; self.seen = set(); self.dead = False
        self.reset_state()
        self.nlabel = 0

    def reset_state(self):
        self.t = 0
        self.vw = {}
        self.sw = {}
        self.mfc = {}
        self.stw = {}
        self.m0t = -100
        self.vm = []
        self.lg = []

    def raw(self, s):
        self.out.append(s)

    def comment(self, s):
        self.out.append("    ; " + s)

    def _nop(self, n):
        while n > 0:
            k = min(n, 16)
            self.out.append(f"    s_nop {k-1}")
            self.t += k
            n -= k

    def _wait(self, vm=None, lg=None):
        parts = []
        if vm is not None:
            vm = min(vm, 63)
            parts.append(f"vmcnt({vm})"); self.vm = self.vm[max(0, len(self.vm) - vm):] if vm else []
        if lg is not None:
            lg = min(lg, 15)
            parts.append(f"lgkmcnt({lg})"); self.lg = self.lg[max(0, len(self.lg) - lg):] if lg else []
        self.out.append("    s_waitcnt " + " ".join(parts))
        self.t += 1

    def wait(self, vm=None, lg=None):
        v = vm if (vm is not None and len(self.vm) > vm) else None
        l = lg if (lg is not None and len(self.lg) > lg) else None
        if v is not None or l is not None:
            self._wait(v, l)

    def waitf(self, vm=None, lg=None):
        self._wait(vm, lg)

    def settle(self):
        need = 0
        for r, (tt, k, p) in self.vw.items():
            w = {"mfma": 8 if p == 4 else 12, "valu": 2, "trans": 2}[k]
            need = max(need, w - (self.t - tt - 1))
        for r, tt in self.sw.items():
            need = max(need, 5 - (self.t - tt - 1))
        for r, (tt, p) in self.mfc.items():
            need = max(need, (3 if p == 4 else 7) - (self.t - tt - 1))
        for r, tt in self.stw.items():
            need = max(need, 2 - (self.t - tt - 1))
        need = max(need, 1 - (self.t - self.m0t - 1))
        if need > 0: self._nop(need)

    def label(self, name, keep=True):
        self.settle()
        states = self.snap.pop(name, [])
        if not self.dead:
            states.append((list(self.vm), list(self.lg)))
        self.dead = False
        if states:
            n = max(len(v) for v, _ in states)
            self.vm = [set().union(*[v[len(v) - n + i] for v, _ in states if len(v) - n + i >= 0]) for i in range(n)]
            n = max(len(l) for _, l in states)
            lg = []
            for i in range(n):
                ent = [l[len(l) - n + i] for _, l in states if len(l) - n + i >= 0]
                lg.append((set().union(*[e[0] for e in ent]), any(e[1] for e in ent)))
            self.lg = lg
        self.seen.add(name)
        self.out.append(name + ":")

    def branch(self, op, target, keep=True, novm=False):
        self.settle()
        if target not in self.seen:
            self.snap.setdefault(target, []).append(([set() for _ in self.vm] if novm else list(self.vm), list(self.lg)))
        self.out.append(f"    {op} {target}")
        self.t += 1
        if op == "s_branch":
            self.dead = True

    def newlabel(self, p="L"):
        self.nlabel += 1
        return f"{p}_{self.nlabel}"

    def barrier(self, vm=False):
        self._wait(0 if vm else None, 0)
        self.out.append("    s_barrier"); self.t += 1

    def __call__(self, text):
        for line in text.strip().split("\n"):
            line = line.strip()
            if not line or line.startswith(";"):
                continue
            self.ins(line)

    def ins(self, text):
        I = Ins(text)
        assert not I.op.startswith(("s_cbranch", "s_branch", "s_barrier")), "use branch()/barrier()"
        touched = set(I.r) | set(I.w)
        nv = None
        for i, d in enumerate(self.vm):
            if d & touched: nv = len(self.vm) - 1 - i
        nl = None
        for i, (d, sm) in enumerate(self.lg):
            if d & touched: nl = len(self.lg) - 1 - i
        if nl is not None and any(sm for _, sm in self.lg):
            nl = 0
        if nv is not None or nl is not None:
            self._wait(nv, nl)
        need = 0
        def el(tt): return self.t - tt - 1
        isv = I.kind in ("valu", "trans")
        for r in I.r:
            if r in self.vw:
                tt, k, p = self.vw[r]
                if k == "mfma":
                    if I.kind == "mfma":
                        if r in I.ra: w = 8 if p == 4 else 12
                        else:
                            same = self.vw.get(I.rc[0], (None,))[0] == tt and self.vw.get(I.rc[-1], (None,))[0] == tt and I.passes == p and self.mfd.get(tt) == (I.rc[0], I.rc[-1])
                            w = 0 if same else (6 if p == 4 else 10)
                    else: w = 8 if p == 4 else 12
                    need = max(need, w - el(tt))
                else:
                    if I.kind == "mfma": need = max(need, 2 - el(tt))
                    if k == "trans" and isv and I.kind != "trans": need = max(need, 1 - el(tt))
                    if k == "trans" and I.kind == "trans": need = max(need, 1 - el(tt))
                    if I.op.startswith(("v_readfirstlane", "v_readlane")): need = max(need, 1 - el(tt))
                    if I.op.startswith("v_permlane") or "dpp" in I.op or "row_" in I.mods or "quad_perm" in I.mods: need = max(need, 2 - el(tt))
            if r in self.sw:
                tt = self.sw[r]
                if I.kind == "vmem": need = max(need, 5 - el(tt))
                elif isv or I.kind == "mfma": need = max(need, (4 if I.op.startswith(("v_readlane", "v_writelane")) else 2) - el(tt))
                elif I.kind in ("salu", "smem"): need = max(need, 2 - el(tt))
            if r == ("m", 0) and I.kind in ("vmem", "ds"):
                need = max(need, 1 - el(self.m0t))
        for r in I.w:
            if r in self.vw and self.vw[r][1] == "mfma":
                tt, k, p = self.vw[r]
                if I.kind == "mfma":
                    same = self.mfd.get(tt) == (I.w[0], I.w[-1]) and I.passes == p
                    if not same: need = max(need, (6 if p == 4 else 10) - el(tt))
                else:
                    need = max(need, (8 if p == 4 else 12) - el(tt))
            if r in self.mfc and I.kind != "mfma":
                tt, p = self.mfc[r]
                need = max(need, (3 if p == 4 else 7) - el(tt))
            if r in self.stw:
                need = max(need, 2 - el(self.stw[r]))
        if need > 0: self._nop(need)
        self.out.append("    " + I.text)
        if I.op == "s_nop":
            self.t += int(I.ops[0]) + 1
            return
        now = self.t
        self.t += 1
        if I.kind == "mfma":
            if not hasattr(self, "mfd"): self.mfd = {}
            self.mfd[now] = (I.w[0], I.w[-1])
            for r in I.w: self.vw[r] = (now, "mfma", I.passes)
            for r in I.rc: self.mfc[r] = (now, I.passes)
        elif isv:
            for r in I.w:
                if r[0] == "v": self.vw[r] = (now, I.kind, 0)
                elif r[0] == "s": self.sw[r] = now
        else:
            for r in I.w:
                self.vw.pop(r, None)
                self.sw.pop(r, None)
                if r == ("m", 0): self.m0t = now
        if I.kind == "vmem" and hasattr(I, "sdata") and ("x3" in I.op or "x4" in I.op):
            for r in I.sdata: self.stw[r] = now
        if I.op == "s_waitcnt":
            m = re.search(r"vmcnt\((\d+)\)", I.text)
            if m:
                n = int(m.group(1)); self.vm = self.vm[len(self.vm) - n:] if n and n < len(self.vm) else ([] if n == 0 else self.vm)
            m = re.search(r"lgkmcnt\((\d+)\)", I.text)
            if m:
                n = int(m.group(1)); self.lg = self.lg[len(self.lg) - n:] if n and n < len(self.lg) else ([] if n == 0 else self.lg)
        if I.mem == "vm": self.vm.append(set(I.loaddst))
        if I.mem == "lgkm": self.lg.append((set(I.loaddst), I.kind == "smem"))
    mfd = {}

    def text(self):
        return "\n".join(self.out) + "\n"

def V(i, n=1):
    return f"v{i}" if n == 1 else f"v[{i}:{i+n-1}]"
def S(i, n=1):
    return f"s{i}" if n == 1 else f"s[{i}:{i+n-1}]"
```

```python
import numpy as np, sys
def bf2f(u): return (u.astype(np.uint32) << 16).view(np.float32)
def rbf(x):
    x = np.ascontiguousarray(x, dtype=np.float32)
    u = x.view(np.uint32)
    r = ((u + 0x7FFF + ((u >> 16) & 1)) >> 16) << 16
    return r.astype(np.uint32).view(np.float32)
def rc(z): return rbf(z.real) + 1j * rbf(z.imag)
def w(N, e): return np.exp(-2j * np.pi * (np.asarray(e, dtype=np.float64) % N) / N)

def load(seed):
    d = np.load(f"seed{seed}.npz")
    return {k: bf2f(d[k]) for k in d.files}

def partA(x, wr, wi, q=rc):
    x = x[0]
    z = x[:, 0::2] + 1j * x[:, 1::2]
    W = wr + 1j * wi
    zz = z.reshape(16, 128, 320)
    s1 = np.arange(16); s2 = np.arange(128)
    T1 = np.zeros((128, 9, 2, 320), np.complex128)
    for a in range(9):
        for c2 in range(2):
            src = zz if c2 == 0 else np.conj(zz)
            if a in (0, 8):
                F = q(w(16, s1 * a))[None, :] * np.ones((128, 1))
            else:
                F = q(w(2048, (128 * s1[None, :] + s2[:, None]) * a))
            T1[:, a, c2, :] = np.einsum("ts,stj->tj", F, src)
    T1 = q(T1)
    T1r = T1.reshape(128, 9, 2, 20, 16)
    k2a = np.arange(21)
    F20 = q(w(20, np.arange(20)[:, None] * k2a[None, :]))
    T2 = np.einsum("tacjm,jk->tackm", T1r, F20)
    tw = w(320, k2a[:, None] * np.arange(16)[None, :]).astype(np.complex64)
    T2 = q(T2 * tw)
    V = np.zeros((128, 9, 2, 21, 16), np.complex128)
    for a in range(9):
        F = w(16, np.arange(16)[:, None] * np.arange(16)[None, :])[None] * np.ones((128, 1, 1))
        if a == 8:
            F = F * w(2048, 8 * s2)[:, None, None]
        F = q(F)
        V[:, a] = np.einsum("tckm,tmb->tckb", T2[:, a], F)
    V = q(V)
    Vr = V.reshape(16, 8, 9, 2, 21, 16)
    ka = np.arange(16)
    U = np.zeros((16, 8, 9, 2, 21, 16), np.complex128)
    for b in range(8):
        F = q(w(128, (8 * np.arange(16)[:, None] + b) * ka[None, :]))
        U[:, b] = np.einsum("l...,lk->k...", Vr[:, b], F)
    U = q(U)
    F8 = q(w(8, np.arange(8)[:, None] * np.arange(8)[None, :]))
    Z = np.einsum("kb...,bq->kq...", U, F8)
    k1b = ka[:, None] + 16 * np.arange(8)[None, :]
    Zy = np.zeros_like(Z)
    for a in range(9):
        k1 = a + 16 * k1b
        for e in range(21):
            for g in range(16):
                k2 = 20 * g + e
                if a in (0, 8):
                    if g >= 8 or (e == 20 and g != 7): continue
                elif e == 20: continue
                W1 = W[k1, k2]; W2c = np.conj(W[(-k1) % 2048, 320 - k2])
                if k2 == 0:
                    W1 = 0.5 * (W[k1, 0] + np.conj(W[(-k1) % 2048, 0]))
                    W2c = 0.5 * (np.conj(W[(-k1) % 2048, 320]) + W[k1, 320])
                P = 0.5 * (W1 + W2c); M = 0.5 * (W1 - W2c)
                th = 2 * np.pi * k2 / 640
                sc = 1.0 / (2048 * 320)
                if a in (0, 8) and k2 in (0, 160): sc *= 0.5
                a1 = (P - M * np.sin(th)) * sc; a2 = (P + M * np.sin(th)) * sc; bb = 1j * M * np.cos(th) * sc
                z0 = Z[:, :, a, 0, e, g]; z1 = Z[:, :, a, 1, e, g]
                Zy[:, :, a, 0, e, g] = a1 * z0 + bb * z1
                Zy[:, :, a, 1, e, g] = a2 * z1 - bb * z0
    Zy = q(Zy)
    Ub = q(np.einsum("kq...,qb->kb...", Zy, np.conj(F8)))
    Vy = np.zeros((16, 8, 9, 2, 21, 16), np.complex128)
    for b in range(8):
        F = q(np.conj(w(128, (8 * np.arange(16)[:, None] + b) * ka[None, :])))
        Vy[:, b] = np.einsum("k...,lk->l...", Ub[:, b], F)
    Vy = q(Vy).reshape(128, 9, 2, 21, 16)
    T2y = np.zeros((128, 9, 2, 21, 16), np.complex128)
    for a in range(9):
        F = np.conj(w(16, np.arange(16)[:, None] * np.arange(16)[None, :]))[None] * np.ones((128, 1, 1))
        if a == 8:
            F = F * np.conj(w(2048, 8 * s2))[:, None, None]
        F = q(F)
        T2y[:, a] = np.einsum("tckb,tmb->tckm", Vy[:, a], F)
    T2y = q(T2y * np.conj(tw))
    T1y = np.einsum("tackm,jk->tacjm", T2y, np.conj(F20)).reshape(128, 9, 2, 320)
    for a in (0, 8):
        T1y[:, a, 0] = T1y[:, a, 0] + np.conj(T1y[:, a, 1]); T1y[:, a, 1] = 0
    T1y = q(T1y)
    zy = np.zeros((16, 128, 320), np.complex128)
    for a in range(9):
        if a in (0, 8):
            F = q(np.conj(w(16, s1 * a)))[None, :] * np.ones((128, 1))
            zy += np.einsum("ts,tj->stj", F, T1y[:, a, 0])
        else:
            F = q(np.conj(w(2048, (128 * s1[None, :] + s2[:, None]) * a)))
            zy += np.einsum("ts,tj->stj", F, T1y[:, a, 0])
            zy += np.conj(np.einsum("ts,tj->stj", F, T1y[:, a, 1]))
    zy = zy.reshape(2048, 320)
    y = np.zeros((2048, 640), np.float32)
    y[:, 0::2] = zy.real; y[:, 1::2] = zy.imag
    return rbf(y)

if __name__ == "__main__":
    d = load(int(sys.argv[1]) if len(sys.argv) > 1 else 0)
    ref = d["ref"][0]
    for name, q in (("exact", lambda z: z), ("bf16", rc)):
        y = partA(d["A_x"], d["A_w_r"], d["A_w_i"], q)
        err = np.abs(y - ref[:, :640])
        print(name, "max err", err.max(), "rms", np.sqrt((err**2).mean()), "thr", np.abs(ref[:, :640]).max() / 32)
```

```python
from asmlib import *
import struct
def fbits(x): return "0x%08x" % struct.unpack("<I", struct.pack("<f", x))[0]

WS_IN1 = 1 << 20; IN1S = 128 * 224
WS_IN2 = 8 << 20; IN2S = 144 * 224
WS_UIN = 16 << 20
WS_YIN = 24 << 20
WS_DBG = 32 << 20
WS_BYTES = 0x10000000

L_X1 = 0; X1S = 1552; X3S = 1584
L_T1 = 28672
L_W = 45056
L_T2 = 69632
L_Y = 90112; YS = 1296
M14 = (0x3FFF3FFF, 0x3FFF3FFF)

sX, sWS, sWR, sWI, sOUT, sTB = 4, 8, 12, 16, 20, 24
sWAVE, sWA, sTAG, sCLS, sGQ, sAP, sGQP = 28, 29, 30, 31, 32, 33, 34
sT = 35
sPM = 40
sVAL = 48
sSPIN = 50
sU = 52
sSTAMP = 60
vLANE, vN, vG = 1, 2, 3

class Ctx:
    def __init__(self, E, stamps):
        self.E = E; self.stamps = stamps; self.ns = 0
    def stamp(self):
        if self.stamps:
            i = self.ns; self.ns += 1
            if i >= 18: self.ns -= 1; return
            self.E.raw(f"    s_memrealtime s[{sSTAMP+2*i}:{sSTAMP+2*i+1}]")
            self.E.lg.append((set([("s", sSTAMP+2*i), ("s", sSTAMP+2*i+1)]), True))

def srd(E, d, lo, hi, size):
    E(f"""s_mov_b32 s{d}, s{lo}
s_and_b32 s{d+1}, s{hi}, 0xffff
s_mov_b32 s{d+2}, {size}
s_mov_b32 s{d+3}, 0x00020000""")

def setexec(E, lo, hi):
    E(f"s_mov_b32 exec_lo, {lo:#x}\ns_mov_b32 exec_hi, {hi:#x}")
def fullexec(E):
    E("s_mov_b64 exec, -1")

def gen_pair(E, nums, N, dre, dim, tmp, conj=False):
    for j in range(4): E(f"v_cvt_f32_u32 v{nums[j]}, v{nums[j]}")
    for j in range(4): E(f"v_mul_f32 v{nums[j]}, {fbits(1.0/N)}, v{nums[j]}")
    for j in range(4):
        E(f"v_cos_f32 v{tmp+j}, v{nums[j]}")
        E(f"v_sin_f32 v{tmp+4+j}, v{nums[j]}")
    for j in range(4):
        c, s = f"v{tmp+j}", f"v{tmp+4+j}"
        if not conj:
            E(f"v_cvt_pk_bf16_f32 v{dre+j}, {c}, {s}")
            E(f"v_cvt_pk_bf16_f32 v{dim+j}, -{s}, {c}")
        else:
            E(f"v_cvt_pk_bf16_f32 v{dre+j}, {c}, -{s}")
            E(f"v_cvt_pk_bf16_f32 v{dim+j}, {s}, {c}")

def mfma(E, d, a, b, c=None):
    E(f"v_mfma_f32_16x16x32_bf16 {V(d,4)}, {V(a,4)}, {V(b,4)}, {V(c,4) if c is not None else 0}")

def transpose4(E, L):
    for q in range(4):
        for s in range(q + 1, 4):
            E(f"v_swap_b32 v{L+4*q+s}, v{L+4*s+q}")

def poll_tagged(E, nload, dst, issue, slp=2, tagreg=lambda d: [d + 3], tagval=None, ne=True, valids=None, pm=40):
    tv = tagval if tagval is not None else f"s{sTAG}"
    sPM = pm
    vl = valids if valids else [sVAL] * nload
    top = E.newlabel("poll"); done = E.newlabel("polld")
    for i in range(nload):
        E(f"s_mov_b64 s[{sPM+2*i}:{sPM+2*i+1}], s[{vl[i]}:{vl[i]+1}]")
    E(f"s_mov_b32 s{sSPIN}, 0")
    E.label(top, keep=True)
    for i in range(nload):
        sk = E.newlabel("psk")
        E(f"s_mov_b64 exec, s[{sPM+2*i}:{sPM+2*i+1}]")
        E.branch("s_cbranch_execz", sk, keep=True)
        issue(i)
        E.label(sk, keep=True)
    if not valids: E(f"s_mov_b64 exec, s[{sVAL}:{sVAL+1}]")
    E.waitf(vm=0)
    E(f"s_mov_b64 s[{sU}:{sU+1}], 0")
    for i in range(nload):
        regs = tagreg(dst + 4 * i)
        cmpop = "v_cmp_ne_u32" if ne else "v_cmp_eq_u32"
        if valids: E(f"s_mov_b64 exec, s[{vl[i]}:{vl[i]+1}]")
        E(f"{cmpop} s[{sPM+2*i}:{sPM+2*i+1}], {tv}, v{regs[0]}")
        for rr in regs[1:]:
            E(f"{cmpop} vcc, {tv}, v{rr}")
            E(f"s_or_b64 s[{sPM+2*i}:{sPM+2*i+1}], s[{sPM+2*i}:{sPM+2*i+1}], vcc")
        E(f"s_or_b64 s[{sU}:{sU+1}], s[{sU}:{sU+1}], s[{sPM+2*i}:{sPM+2*i+1}]")
    E(f"s_cmp_eq_u64 s[{sU}:{sU+1}], 0")
    E.branch("s_cbranch_scc1", done, keep=True)
    E(f"s_add_u32 s{sSPIN}, s{sSPIN}, 1")
    E(f"s_cmp_gt_u32 s{sSPIN}, 200000")
    E.branch("s_cbranch_scc1", done, keep=True)
    if slp: E(f"s_sleep {slp}")
    E.branch("s_branch", top, keep=True)
    E.label(done, keep=True)
    fullexec(E)

def cmul_tw(E, re, im, c, s, t):
    for h in (0, 2):
        a, b_ = t + 4 + h, t + 8 + h
        E(f"v_pk_mul_f32 {V(a,2)}, {V(re+h,2)}, {V(c+h,2)}")
        E(f"v_pk_mul_f32 {V(b_,2)}, {V(re+h,2)}, {V(s+h,2)}")
    for h in (0, 2):
        a, b_ = t + 4 + h, t + 8 + h
        E(f"v_pk_fma_f32 {V(a,2)}, {V(im+h,2)}, {V(s+h,2)}, {V(a,2)} neg_lo:[1,0,0] neg_hi:[1,0,0]")
        E(f"v_pk_fma_f32 {V(b_,2)}, {V(im+h,2)}, {V(c+h,2)}, {V(b_,2)}")
    for r in range(4):
        E(f"v_cvt_pk_bf16_f32 v{t+r}, v{t+4+r}, v{t+8+r}")

def gen_A(E, C, cfg):
    lab = lambda s: "A_" + s
    vF3 = 8
    vL = 16
    vM = 32
    vA = 96
    vT = 128
    E("v_mov_b32 v148, 0\nv_mov_b32 v153, 0")
    E(f"s_cmp_lt_u32 s{sWAVE}, 7")
    E.branch("s_cbranch_scc1", lab("st_lo"), keep=True)
    E(f"""s_sub_u32 s{sT}, s{sWAVE}, 7
s_lshl_b32 s{sT}, s{sT}, 8
s_mul_i32 s{sT+1}, s{sWA}, 1280
s_add_u32 s{sT}, s{sT}, s{sT+1}
s_add_u32 s{sT+1}, s{sT}, 163840
s_add_u32 s{sT+2}, s{sT}, 327680
s_add_u32 s{sT+3}, s{sT}, 491520
v_and_b32 v4, 3, v{vN}
v_lshlrev_b32 v4, 6, v4
v_lshrrev_b32 v5, 2, v{vN}
v_lshl_add_u32 v4, v5, 4, v4
s_mov_b32 s{sT+4}, 655360
v_mul_lo_u32 v5, s{sT+4}, v{vG}
v_add_u32 v5, v5, v4""")
    for q in range(4):
        E(f"buffer_load_dwordx4 {V(vL+4*q,4)}, v5, s[{sX}:{sX+3}], s{sT+q} offen")
    E(f"""v_lshrrev_b32 v6, 1, v{vN}
v_add_u32 v6, 1, v6
v_cmp_ne_u32 vcc, 14, v{vN}
v_cndmask_b32 v6, 0, v6, vcc
v_mov_b32 v7, s{sWA}
v_cmp_gt_u32 vcc, 14, v{vN}
v_cndmask_b32 v7, 0, v7, vcc
v_lshl_add_u32 v7, v{vG}, 9, v7
v_and_b32 v{vT+12}, 1, v{vN}
v_lshlrev_b32 v{vT+12}, 31, v{vT+12}
v_cndmask_b32 v{vT+12}, 0, v{vT+12}, vcc""")
    for j in range(4):
        E(f"v_add_u32 v{vT+j}, {128*j}, v7")
        E(f"v_mul_u32_u24 v{vT+j}, v{vT+j}, v6")
        E(f"v_and_b32 v{vT+j}, 2047, v{vT+j}")
    gen_pair(E, [vT+j for j in range(4)], 2048, vM, vM+4, vT+4)
    for j in range(8):
        E(f"v_xor_b32 v{vM+j}, v{vT+12}, v{vM+j}")
    E(f"""v_mul_u32_u24 v6, {X1S}, v{vN}
v_mul_u32_u24 v7, 384, v{vG}
s_sub_u32 s{sT}, s{sWAVE}, 7
s_lshl_b32 s{sT}, s{sT}, 4
v_add3_u32 v6, v6, v7, s{sT}""")
    E.branch("s_branch", lab("st_join"), keep=True)
    E.label(lab("st_lo"), keep=True)
    E(f"s_cmp_gt_u32 s{sWAVE}, 3")
    E.branch("s_cbranch_scc1", lab("no_t1"), keep=True)
    E(f"""v_lshlrev_b32 v4, 4, v{vLANE}
s_lshl_b32 s{sT}, s{sWAVE}, 12
s_add_u32 s{sT+1}, s{sT}, {L_T1}
s_mov_b32 m0, s{sT+1}""")
    for i in range(4):
        E(f"buffer_load_dwordx4 v4, s[{sTB}:{sTB+3}], s{sT} offen offset:{1024*i} lds")
    E.label(lab("no_t1"), keep=True)
    E(f"s_cmp_gt_u32 s{sWAVE}, 5")
    E.branch("s_cbranch_scc1", lab("no_w"), keep=True)
    E(f"""s_lshl_b32 s{sT}, s{sWAVE}, 6
v_add_u32 v4, s{sT}, v{vLANE}
v_mul_u32_u24 v5, 21846, v4
v_lshrrev_b32 v5, 16, v5
v_mul_u32_u24 v6, 3, v5
v_sub_u32 v4, v4, v6
v_lshlrev_b32 v4, 4, v4
v_lshlrev_b32 v5, 4, v5
v_add_u32 v5, s{sAP}, v5
v_sub_u32 v6, 2048, v5
v_and_b32 v6, 2047, v6
v_mul_u32_u24 v5, 642, v5
v_mul_u32_u24 v6, 642, v6
v_add_u32 v5, v5, v4
v_add_u32 v6, v6, v4
s_and_b32 s{sT+1}, s{sAP}, 1
s_lshl_b32 s{sT+1}, s{sT+1}, 1
s_mul_i32 s{sT+2}, s{sGQP}, 40
s_sub_u32 s{sT+3}, 600, s{sT+2}
v_subrev_u32 v5, s{sT+1}, v5
v_subrev_u32 v6, s{sT+1}, v6
s_lshl_b32 s{sT}, s{sWAVE}, 10
s_add_u32 s{sT}, s{sT}, {L_W}""")
    for arr, (va, so, sr) in enumerate([(5, sT+2, sWR), (5, sT+2, sWI), (6, sT+3, sWR), (6, sT+3, sWI)]):
        E(f"s_add_u32 m0, s{sT}, {arr*6144}")
        E(f"buffer_load_dwordx4 v{va}, s[{sr}:{sr+3}], s{so} offen lds")
    E.label(lab("no_w"), keep=True)
    E.waitf(vm=4)
    E.label(lab("st_join"), keep=True)
    E(f"""s_lshl_b32 s{sT}, s{sWA}, 3
s_cmp_eq_u32 s{sWAVE}, 8
s_cselect_b32 s{sT}, s{sT}, 0
v_lshlrev_b32 v7, 7, v{vN}
v_lshlrev_b32 v{vT+13}, 2, v{vG}""")
    for j in range(4):
        E(f"v_add_u32 v{vT+j}, {j}, v{vT+13}")
        E(f"v_mul_u32_u24 v{vT+j}, v{vT+j}, v7")
        E(f"v_add_u32 v{vT+j}, s{sT}, v{vT+j}")
        E(f"v_and_b32 v{vT+j}, 2047, v{vT+j}")
    gen_pair(E, [vT+j for j in range(4)], 2048, vF3, vF3+4, vT+4)
    E.barrier()
    C.stamp()
    vTB = 40
    vA = 104; vT2 = 136
    E(f"s_cmp_lt_u32 s{sWAVE}, 7")
    E.branch("s_cbranch_scc1", lab("s1_skip"), novm=True)
    E.wait(vm=0)
    C.stamp()
    transpose4(E, vL)
    for s in range(4):
        mfma(E, vA + 8*s, vL + 4*s, vM)
        mfma(E, vA + 8*s + 4, vL + 4*s, vM + 4)
    for s in range(4):
        for r in range(4):
            E(f"v_cvt_pk_bf16_f32 v{vL+4*s+r}, v{vA+8*s+r}, v{vA+8*s+4+r}")
        E(f"ds_write_b128 v6, {V(vL+4*s,4)} offset:{L_X1 + 96*s}")
    E.label(lab("s1_skip"), keep=True)
    E(f"s_cmp_gt_u32 s{sWAVE}, 8")
    E.branch("s_cbranch_scc1", lab("s2_skipA"), keep=True)
    E(f"v_lshlrev_b32 v7, 4, v{vLANE}")
    for i in range(16):
        E(f"ds_read_b128 {V(vTB+4*i,4)}, v7 offset:{L_T1 + 1024*i}")
    E(f"""s_lshl_b32 s{sT}, s{sWAVE}, 1
s_add_u32 s{sT+1}, s{sWAVE}, 7
s_min_u32 s{sT}, s{sT}, s{sT+1}
s_mul_i32 s{sT}, s{sT}, {X1S}
s_cmp_lt_u32 s{sWAVE}, 7
s_cselect_b32 s{sT+1}, {X1S}, 0
v_mul_u32_u24 v4, 96, v{vN}
v_add_u32 v4, s{sT}, v4
v_and_b32 v5, 1, v{vG}
v_lshlrev_b32 v{vT2+13}, 31, v5
v_mul_lo_u32 v5, s{sT+1}, v5
v_add3_u32 v5, v5, v4, 64
v_lshl_add_u32 v4, v{vG}, 4, v4
v_add_u32 v7, s{sT+1}, v4""")
    E(f"""s_min_u32 s{sT}, s{sWAVE}, 7
s_mul_i32 s{sT}, s{sT}, {IN1S}
s_cmp_eq_u32 s{sWAVE}, 8
s_cselect_b32 s{sT+1}, {8*8*IN1S}, 0
s_add_u32 s{sT}, s{sT}, s{sT+1}
s_and_b32 s{sT+1}, s{sWA}, 7
s_lshl_b32 s{sT+1}, s{sT+1}, 2
s_bfe_u32 s{sT+2}, s{sWA}, 0x20003
s_add_u32 s{sT+1}, s{sT+1}, s{sT+2}
s_lshl_b32 s{sT+1}, s{sT+1}, 2
s_lshr_b32 s{sT+2}, s{sWA}, 5
s_add_u32 s{sT+1}, s{sT+1}, s{sT+2}
s_mul_i32 s{sT+1}, s{sT+1}, 224
s_add_u32 s{sT}, s{sT}, s{sT+1}
s_add_u32 s{sT}, s{sT}, {WS_IN1}
s_add_u32 s{sT+1}, s{sT}, {8*IN1S}
s_add_u32 s{sT+2}, s{sT}, {16*IN1S}
s_add_u32 s{sT+3}, s{sT}, {24*IN1S}
s_mov_b32 s{sT+4}, {32*IN1S}
v_mul_lo_u32 v{vT2+12}, s{sT+4}, v{vG}
v_lshl_add_u32 v{vT2+12}, v{vN}, 4, v{vT2+12}""")
    E.label(lab("s2_skipA"))
    E.barrier()
    C.stamp()
    E(f"s_cmp_gt_u32 s{sWAVE}, 8")
    E.branch("s_cbranch_scc1", lab("s2_skip"), keep=True)
    X0, X1_, X2 = vL, vL + 4, vL + 8
    E(f"ds_read_b128 {V(X0,4)}, v4 offset:{L_X1}")
    E(f"ds_read_b128 {V(X1_,4)}, v7 offset:{L_X1}")
    E(f"ds_read_b128 {V(X2,4)}, v5 offset:{L_X1}")
    E(f"s_cmp_lt_u32 s{sWAVE}, 7")
    E.branch("s_cbranch_scc1", lab("noconj"), keep=True)
    for j in range(4):
        E(f"v_xor_b32 v{X1_+j}, 0x80000000, v{X1_+j}")
        E(f"v_xor_b32 v{X2+j}, v{vT2+13}, v{X2+j}")
    E.label(lab("noconj"))
    if cfg.get("fine"): E.waitf(lg=0); C.stamp()
    F = lambda i: vTB + 4 * i
    aA, aB, aC = vA, vA + 8, vA + 16
    for h in (0, 1):
        mfma(E, aA + 4*h, X0, F(0 + h))
    for h in (0, 1):
        mfma(E, aB + 4*h, X1_, F(0 + h))
    for h in (0, 1):
        mfma(E, aC + 4*h, X0, F(6 + h))
    for h in (0, 1):
        mfma(E, aA + 4*h, X2, F(2 + h), aA + 4*h)
    for h in (0, 1):
        mfma(E, aB + 4*h, X2, F(4 + h), aB + 4*h)
    for h in (0, 1):
        mfma(E, aC + 4*h, X1_, F(8 + h), aC + 4*h)
    for h in (0, 1):
        mfma(E, aC + 4*h, X2, F(10 + h), aC + 4*h)
    if cfg.get("fine"): C.stamp()
    opA, opB, opC = vT2, vT2 + 16, 40
    cmul_tw(E, aA, aA + 4, F(12), F(13), opA)
    mfma(E, aA, vF3, opA); mfma(E, aA + 4, vF3 + 4, opA)
    cmul_tw(E, aB, aB + 4, F(12), F(13), 52)
    mfma(E, aB, vF3, 52); mfma(E, aB + 4, vF3 + 4, 52)
    cmul_tw(E, aC, aC + 4, F(14), F(15), opC)
    mfma(E, aC, vF3, opC); mfma(E, aC + 4, vF3 + 4, opC)
    if cfg.get("fine"): C.stamp()
    E(f"s_add_u32 s{sTAG}, s59, 1")
    for r in range(4):
        E(f"v_mov_b32 v{vL+4*r+3}, s{sTAG}")
    for s, a in enumerate((aA, aB, aC)):
        for r in range(4):
            E(f"v_cvt_pk_bf16_f32 v{vL+4*r+s}, v{a+r}, v{a+4+r}")
    if cfg.get("fine"): C.stamp()
    E(f"s_cmp_lt_u32 s{sWAVE}, 7")
    E(f"s_cselect_b32 exec_hi, {M14[1]:#x}, 0")
    E(f"s_mov_b32 exec_lo, {M14[0]:#x}")
    for r in range(4):
        E(f"buffer_store_dwordx4 {V(vL+4*r,4)}, v{vT2+12}, s[{sWS}:{sWS+3}], s{sT+r} offen sc1")
    fullexec(E)
    E.branch("s_branch", lab("p1_done"), keep=True)
    E.label(lab("s2_skip"), keep=True)
    E(f"""s_sub_u32 s{sT}, s{sWAVE}, 9
s_mul_i32 s{sT}, s{sT}, 7168
s_add_u32 s{sT+1}, s{sT}, {L_T2}
s_add_u32 s{sT}, s{sT}, 16384
v_lshlrev_b32 v4, 4, v{vLANE}
s_add_u32 s{sTAG}, s59, 1""")
    for i in range(7):
        if i % 4 == 0:
            E(f"s_add_u32 m0, s{sT+1}, {4096*(i//4)}")
            if i: E(f"s_add_u32 s{sT}, s{sT}, 4096")
        E(f"buffer_load_dwordx4 v4, s[{sTB}:{sTB+3}], s{sT} offen offset:{1024*(i%4)} lds")
    E.label(lab("p1_done"), keep=True)
    C.stamp()
    vFa, vFl = 40, 48
    vD = 56
    vCo = 72
    E(f"""s_and_b32 s{sT}, s{sWAVE}, 7
v_lshlrev_b32 v{vT2+13}, 2, v{vG}
v_lshl_add_u32 v7, v{vN}, 3, s{sT}""")
    for j in range(4):
        E(f"v_add_u32 v{vT2+j}, {j}, v{vT2+13}")
        E(f"v_lshl_add_u32 v{vT2+16+j}, v{vT2+j}, 3, s{sT}")
        E(f"v_mul_u32_u24 v{vT2+16+j}, v{vT2+16+j}, v{vN}")
        E(f"v_and_b32 v{vT2+16+j}, 127, v{vT2+16+j}")
        E(f"v_mul_u32_u24 v{vT2+j}, v{vT2+j}, v7")
        E(f"v_and_b32 v{vT2+j}, 127, v{vT2+j}")
    gen_pair(E, [vT2+16+j for j in range(4)], 128, vFa, vFa+4, vT2+4)
    gen_pair(E, [vT2+j for j in range(4)], 128, vFl, vFl+4, vT2+4, conj=True)
    E.waitf(vm=0)
    E.barrier()
    C.stamp()
    E(f"v_lshlrev_b32 v7, 4, v{vLANE}\nv_add_u32 v7, {L_T2}, v7")
    for i in range(4):
        E(f"ds_read_b128 {V(vD+4*i,4)}, v7 offset:{1024*i}")
    E(f"s_cmp_gt_u32 s{sWAVE}, 10")
    E.branch("s_cbranch_scc1", lab("co_skip"), keep=True)
    vw = vA
    for j in range(16): E(f"v_mov_b32 v{vw+j}, 0")
    E(f"""v_lshl_add_u32 v4, v{vG}, 5, v{vN}
v_mul_u32_u24 v4, 48, v4
s_and_b32 s{sT}, s{sAP}, 1
s_lshl_b32 s{sT}, s{sT}, 1
s_lshl_b32 s{sT+1}, s{sWAVE}, 2
s_add_u32 s{sT+2}, s{sT}, s{sT+1}
s_sub_u32 s{sT+3}, s{sT}, s{sT+1}
s_add_u32 s{sT+3}, s{sT+3}, 38
v_add_u32 v5, s{sT+2}, v4
v_add_u32 v6, s{sT+3}, v4""")
    for i in range(2):
        for arr in range(4):
            for k in range(2):
                va = 5 if arr < 2 else 6
                off = L_W + arr * 6144 + k * 768 + (2 * i if arr < 2 else 2 - 2 * i)
                E(f"ds_read_u16_d16_hi v{vw+8*i+2*arr+k}, v{va} offset:{off}")
    E(f"s_or_b32 s{sT}, s{sWAVE}, s{sGQP}")
    E(f"s_cmp_lg_u32 s{sT}, 0")
    E.branch("s_cbranch_scc1", lab("nosym"))
    x = vT2
    for j in range(8): E(f"v_mov_b32 v{x+j}, 0")
    E(f"""v_lshl_add_u32 v4, v{vG}, 5, v{vN}
v_lshlrev_b32 v4, 4, v4
v_add_u32 v4, s{sAP}, v4
v_add_u32 v5, 256, v4
v_sub_u32 v6, 2048, v4
v_sub_u32 v7, 2048, v5
v_and_b32 v6, 2047, v6
v_and_b32 v7, 2047, v7
v_mul_u32_u24 v4, 642, v4
v_mul_u32_u24 v5, 642, v5
v_mul_u32_u24 v6, 642, v6
v_mul_u32_u24 v7, 642, v7""")
    for k in range(2):
        E(f"buffer_load_short_d16_hi v{x+k}, v{6+k}, s[{sWR}:{sWR+3}], 0 offen")
        E(f"buffer_load_short_d16_hi v{x+2+k}, v{6+k}, s[{sWI}:{sWI+3}], 0 offen")
        E(f"buffer_load_short_d16_hi v{x+4+k}, v{4+k}, s[{sWR}:{sWR+3}], 0 offen offset:640")
        E(f"buffer_load_short_d16_hi v{x+6+k}, v{4+k}, s[{sWI}:{sWI+3}], 0 offen offset:640")
    for arr in range(4):
        for k in range(2):
            op = "v_add_f32" if arr % 2 == 0 else "v_sub_f32"
            E(f"{op} v{vw+2*arr+k}, v{vw+2*arr+k}, v{x+2*arr+k}")
            E(f"v_mul_f32 v{vw+2*arr+k}, 0.5, v{vw+2*arr+k}")
    E.label(lab("nosym"))
    for i in range(2):
        p, q, r = vT2, vT2 + 2, vT2 + 4
        E(f"""s_lshl_b32 s{sT}, s{sWAVE}, 1
s_add_u32 s{sT}, s{sT}, {i}
s_mul_i32 s{sT+1}, s{sGQP}, 20
s_add_u32 s{sT+1}, s{sT+1}, s{sT}
s_mov_b32 s{sT+2}, {fbits(0.5/(2048*320))}
s_cmp_eq_u32 s{sT+1}, 0
s_cselect_b32 s{sT+3}, {fbits(0.25/(2048*320))}, s{sT+2}
s_cmp_eq_u32 s{sT+1}, 160
s_cselect_b32 s{sT+3}, {fbits(0.25/(2048*320))}, s{sT+3}
s_cmp_eq_u32 s{sCLS}, 7
s_cselect_b32 s{sT+2}, s{sT+3}, s{sT+2}
s_cselect_b32 s{sT+3}, s{sT+1}, 0
s_cmp_eq_u32 s{sT+3}, 160
s_cselect_b32 s{sT+3}, s{sT+2}, 0
s_cmp_lt_u32 s{sT}, 20
s_cselect_b32 s{sT+2}, s{sT+2}, s{sT+3}
s_cmp_gt_u32 s{sT}, 20
s_cselect_b32 s{sT+2}, 0, s{sT+2}
v_cvt_f32_u32 v{vT2+6}, s{sT+1}
v_mul_f32 v{vT2+6}, {fbits(1.0/640)}, v{vT2+6}
v_sin_f32 v{vT2+7}, v{vT2+6}
v_cos_f32 v{vT2+8}, v{vT2+6}
v_sub_f32 v{p}, 1.0, v{vT2+7}
v_add_f32 v{q}, 1.0, v{vT2+7}
v_mul_f32 v{p}, s{sT+2}, v{p}
v_mul_f32 v{q}, s{sT+2}, v{q}
v_mul_f32 v{r}, s{sT+2}, v{vT2+8}""")
        W1r, W1i, W2r, W2i = [V(vw + 8*i + 2*a, 2) for a in range(4)]
        c = vCo + 12 * i
        bc = "op_sel_hi:[0,1]"; bc3 = "op_sel_hi:[0,1,1]"
        P_, Q_, R_ = V(p, 2), V(q, 2), V(r, 2)
        E(f"""v_pk_mul_f32 {V(c,2)}, {P_}, {W1r} {bc}
v_pk_mul_f32 {V(c+2,2)}, {P_}, {W1i} {bc}
v_pk_mul_f32 {V(c+4,2)}, {Q_}, {W1r} {bc}
v_pk_mul_f32 {V(c+6,2)}, {Q_}, {W1i} {bc}
v_pk_add_f32 {V(c+8,2)}, {W1i}, {W2i}
v_pk_add_f32 {V(c+10,2)}, {W1r}, {W2r} neg_lo:[0,1] neg_hi:[0,1]
v_pk_fma_f32 {V(c,2)}, {Q_}, {W2r}, {V(c,2)} {bc3}
v_pk_fma_f32 {V(c+2,2)}, {Q_}, {W2i}, {V(c+2,2)} {bc3} neg_lo:[1,0,0] neg_hi:[1,0,0]
v_pk_fma_f32 {V(c+4,2)}, {P_}, {W2r}, {V(c+4,2)} {bc3}
v_pk_fma_f32 {V(c+6,2)}, {P_}, {W2i}, {V(c+6,2)} {bc3} neg_lo:[1,0,0] neg_hi:[1,0,0]
v_pk_mul_f32 {V(c+8,2)}, {R_}, {V(c+8,2)} {bc} neg_lo:[1,0] neg_hi:[1,0]
v_pk_mul_f32 {V(c+10,2)}, {R_}, {V(c+10,2)} {bc}""")
    E.label(lab("co_skip"))
    vMW, vST = vT2 + 14, vT2 + 15
    E(f"""s_and_b32 s{sT}, s{sWAVE}, 7
s_mul_i32 s{sT+1}, s{sT}, {16*224}
s_mul_i32 s{sT+2}, s{sWA}, {IN1S}
s_add_u32 s{sT+1}, s{sT+1}, s{sT+2}
s_add_u32 s{sT+1}, s{sT+1}, {WS_IN1}
v_mul_u32_u24 v4, 224, v{vG}
v_lshl_add_u32 v4, v{vN}, 4, v4
v_add_u32 v4, s{sT+1}, v4
s_mul_i32 s{sT+1}, s{sT}, 80
s_add_u32 s{sT+1}, s{sT+1}, {L_Y}
v_lshl_add_u32 v5, v{vG}, 4, s{sT+1}
v_mov_b32 v6, {7*YS + 640}
v_mov_b32 v7, {14*YS}
v_cmp_gt_u32 vcc, 7, v{vN}
v_cndmask_b32 v6, v6, v7, vcc
v_mul_u32_u24 v7, {YS}, v{vN}
v_add_u32 v5, v5, v7
v_add_u32 v6, v6, v5
s_mul_i32 s{sT+1}, s{sWAVE}, {2*YS}
s_add_u32 s{sT+1}, s{sT+1}, {L_Y}
v_mul_u32_u24 v7, 320, v{vG}
v_lshl_add_u32 v7, v{vN}, 2, v7
v_add_u32 v7, s{sT+1}, v7
v_mul_u32_u24 v{vMW}, 80, v{vN}
v_lshl_add_u32 v{vMW}, v{vG}, 4, v{vMW}
v_add_u32 v{vMW}, s{sT+1}, v{vMW}
s_lshr_b32 s{sT+1}, s{sGQ}, 3
s_add_u32 s{sT+1}, s{sT+1}, 7
s_cmp_eq_u32 s{sCLS}, 7
s_cselect_b32 s{sT+1}, s{sT+1}, s{sCLS}
s_lshl_b32 s{sT+1}, s{sT+1}, 2
s_and_b32 s{sT+2}, s{sGQP}, 3
s_add_u32 s{sT+1}, s{sT+1}, s{sT+2}
s_lshl_b32 s{sT+1}, s{sT+1}, 2
s_lshr_b32 s{sT+2}, s{sGQP}, 2
s_add_u32 s{sT+1}, s{sT+1}, s{sT+2}
s_mul_i32 s{sT+1}, s{sT+1}, 224
s_mul_i32 s{sT+2}, s{sT}, {IN2S}
s_add_u32 s{sT+1}, s{sT+1}, s{sT+2}
s_add_u32 s54, s{sT+1}, {WS_IN2}
s_add_u32 s55, s54, {8*IN2S}
s_add_u32 s56, s54, {16*IN2S}
s_add_u32 s57, s54, {24*IN2S}
s_mov_b32 s{sT+1}, {32*IN2S}
v_mul_lo_u32 v{vST}, s{sT+1}, v{vG}
v_lshl_add_u32 v{vST}, v{vN}, 4, v{vST}""")
    C.stamp()
    E(f"s_cmp_gt_u32 s{sWAVE}, 7")
    E.branch("s_cbranch_scc1", lab("sa_skip"))
    E(f"s_mov_b32 s{sVAL}, {M14[0]:#x}\ns_mov_b32 s{sVAL+1}, {M14[1]:#x}")
    if cfg.get("d1"): E(f"s_sleep {cfg['d1']}")
    poll_tagged(E, 4, vL, lambda i: E(f"buffer_load_dwordx4 {V(vL+4*i,4)}, v4, s[{sWS}:{sWS+3}], 0 offen offset:{896*i} sc1"), slp=cfg.get("slp", 2))
    C.stamp()
    transpose4(E, vL)
    for s in range(3):
        mfma(E, vA + 8*s, vFa, vL + 4*s)
        mfma(E, vA + 8*s + 4, vFa + 4, vL + 4*s)
    setexec(E, *M14)
    for s in range(3):
        for r in range(4):
            E(f"v_cvt_pk_bf16_f32 v{vL+4*s+r}, v{vA+8*s+r}, v{vA+8*s+4+r}")
        E(f"ds_write_b128 v{(5,5,6)[s]}, {V(vL+4*s,4)} offset:{(0,640,0)[s]}")
    fullexec(E)
    E.label(lab("sa_skip"))
    E.barrier()
    C.stamp()
    E(f"s_cmp_gt_u32 s{sWAVE}, 10")
    E.branch("s_cbranch_scc1", lab("mid_skip"))
    for i in range(2):
        E(f"ds_read2_b32 {V(vL+4*i,2)}, v7 offset0:0 offset1:20" if i == 0 else f"v_add_u32 v7, {YS}, v7\nds_read2_b32 {V(vL+4*i,2)}, v7 offset0:0 offset1:20")
        E(f"ds_read2_b32 {V(vL+4*i+2,2)}, v7 offset0:40 offset1:60")
    for i in range(2):
        mfma(E, vA + 8*i, vD, vL + 4*i)
        mfma(E, vA + 8*i + 4, vD + 4, vL + 4*i)
    for i in range(2):
        zr, zi = vA + 8*i, vA + 8*i + 4
        c = vCo + 12*i
        a1r, a1i, a2r, a2i, br, bi = [V(c + 2*k, 2) for k in range(6)]
        Z0r, Z1r, Z0i, Z1i = V(zr, 2), V(zr+2, 2), V(zi, 2), V(zi+2, 2)
        y = vA + 16 + 8*i
        Y0r, Y1r, Y0i, Y1i = V(y, 2), V(y+2, 2), V(y+4, 2), V(y+6, 2)
        ng = "neg_lo:[1,0,0] neg_hi:[1,0,0]"
        E(f"""v_pk_mul_f32 {Y0r}, {a1r}, {Z0r}
v_pk_mul_f32 {Y0i}, {a1r}, {Z0i}
v_pk_mul_f32 {Y1r}, {a2r}, {Z1r}
v_pk_mul_f32 {Y1i}, {a2r}, {Z1i}
v_pk_fma_f32 {Y0r}, {a1i}, {Z0i}, {Y0r} {ng}
v_pk_fma_f32 {Y0i}, {a1i}, {Z0r}, {Y0i}
v_pk_fma_f32 {Y1r}, {a2i}, {Z1i}, {Y1r} {ng}
v_pk_fma_f32 {Y1i}, {a2i}, {Z1r}, {Y1i}
v_pk_fma_f32 {Y0r}, {br}, {Z1r}, {Y0r}
v_pk_fma_f32 {Y0i}, {br}, {Z1i}, {Y0i}
v_pk_fma_f32 {Y1r}, {br}, {Z0r}, {Y1r} {ng}
v_pk_fma_f32 {Y1i}, {br}, {Z0i}, {Y1i} {ng}
v_pk_fma_f32 {Y0r}, {bi}, {Z1i}, {Y0r} {ng}
v_pk_fma_f32 {Y0i}, {bi}, {Z1r}, {Y0i}
v_pk_fma_f32 {Y1r}, {bi}, {Z0i}, {Y1r}
v_pk_fma_f32 {Y1i}, {bi}, {Z0r}, {Y1i} {ng}""")
        for r in range(4):
            E(f"v_cvt_pk_bf16_f32 v{vL+8+4*i+r}, v{y+r}, v{y+4+r}")
        mfma(E, zr, vL + 8 + 4*i, vD + 8)
        mfma(E, zi, vL + 8 + 4*i, vD + 12)
    for i in range(2):
        zr, zi = vA + 8*i, vA + 8*i + 4
        for r in range(4):
            E(f"v_cvt_pk_bf16_f32 v{vL+4*i+r}, v{zr+r}, v{zi+r}")
        E(f"ds_write_b128 v{vMW}, {V(vL+4*i,4)} offset:{YS*i}")
    E.label(lab("mid_skip"))
    E.barrier()
    C.stamp()
    E(f"s_cmp_gt_u32 s{sWAVE}, 7")
    E.branch("s_cbranch_scc1", lab("sl_skip"))
    for s in range(3):
        E(f"ds_read_b128 {V(vT2+4*s,4)}, v{(5,5,6)[s]} offset:{(0,640,0)[s]}")
    for r in range(4):
        E(f"v_mov_b32 v{vL+4*r+3}, s{sTAG}")
    for s in range(3):
        mfma(E, vA + 8*s, vFl, vT2 + 4*s)
        mfma(E, vA + 8*s + 4, vFl + 4, vT2 + 4*s)
    for s in range(3):
        for r in range(4):
            E(f"v_cvt_pk_bf16_f32 v{vL+4*r+s}, v{vA+8*s+r}, v{vA+8*s+4+r}")
    setexec(E, *M14)
    for r in range(4):
        E(f"buffer_store_dwordx4 {V(vL+4*r,4)}, v{vST}, s[{sWS}:{sWS+3}], s{54+r} offen sc1")
    fullexec(E)
    E.label(lab("sl_skip"), keep=True)
    C.stamp()
    vG1 = 32
    E(f"s_cmp_lt_u32 s{sWAVE}, 7")
    E.branch("s_cbranch_scc1", lab("g1_skip"), keep=True)
    E(f"""v_lshlrev_b32 v4, 7, v{vN}
v_add_u32 v5, s{sWA}, v4
v_cmp_eq_u32 vcc, 3, v{vG}
v_cndmask_b32 v4, v5, v4, vcc
v_lshlrev_b32 v6, 1, v{vG}
v_add_u32 v7, 2, v6
v_add_u32 v6, 1, v6
v_cndmask_b32 v{vT2+12}, v7, 0, vcc
v_mov_b32 v{vT2+13}, 0x80008000
v_cndmask_b32 v{vT2+13}, v{vT2+13}, 0, vcc
v_mul_u32_u24 v{vT2}, v5, v6
v_mul_u32_u24 v{vT2+2}, v4, v{vT2+12}
v_mul_u32_u24 v{vT2+3}, v4, v7
v_and_b32 v{vT2}, 2047, v{vT2}
v_and_b32 v{vT2+2}, 2047, v{vT2+2}
v_and_b32 v{vT2+3}, 2047, v{vT2+3}
v_mov_b32 v{vT2+1}, v{vT2}""")
    gen_pair(E, [vT2+j for j in range(4)], 2048, vG1, vG1+4, vT2+4, conj=True)
    E(f"v_xor_b32 v{vG1+5}, 0x80008000, v{vG1+5}")
    E(f"v_xor_b32 v{vG1+7}, v{vT2+13}, v{vG1+7}")
    E(f"""s_sub_u32 s{sT}, s{sWAVE}, 7
s_lshl_b32 s{sT+1}, s{sT}, 4
v_lshrrev_b32 v4, 2, v{vN}
v_and_b32 v5, 3, v{vN}
v_mul_u32_u24 v6, 400, v4
v_lshl_add_u32 v6, v5, 2, v6
v_mul_u32_u24 v7, {4*X3S}, v{vG}
v_add3_u32 v{vT2+16}, v6, v7, s{sT+1}
v_lshlrev_b32 v5, 6, v5
v_lshl_add_u32 v5, v4, 4, v5
s_mov_b32 s{sT+1}, {512*2560}
v_mul_lo_u32 v6, s{sT+1}, v{vG}
v_add_u32 v{vT2+17}, v5, v6
s_lshl_b32 s{sT}, s{sT}, 8
s_mul_i32 s{sT+1}, s{sWA}, 2560
s_add_u32 s54, s{sT}, s{sT+1}
s_add_u32 s55, s54, {128*2560}
s_add_u32 s56, s54, {256*2560}
s_add_u32 s57, s54, {384*2560}""")
    E.label(lab("g1_skip"), keep=True)
    E(f"s_cmp_gt_u32 s{sWAVE}, 8")
    E.branch("s_cbranch_scc1", lab("p3_skip"), keep=True)
    E(f"v_lshlrev_b32 v7, 4, v{vLANE}\nv_add_u32 v7, {L_T2}, v7")
    for i in range(16):
        E(f"ds_read_b128 {V(vTB+4*i,4)}, v7 offset:{4096 + 1024*i}")
    for j in range(4):
        E(f"v_xor_b32 v{vF3+j}, 0x80000000, v{vF3+j}")
        E(f"v_xor_b32 v{vF3+4+j}, 0x8000, v{vF3+4+j}")
    for j in range(16): E(f"v_mov_b32 v{vL+j}, 0")
    E(f"""s_mul_i32 s{sT}, s{sWAVE}, {16*224}
s_mul_i32 s{sT+1}, s{sWA}, {IN2S}
s_add_u32 s{sT}, s{sT}, s{sT+1}
s_add_u32 s{sT}, s{sT}, {WS_IN2}
v_mul_u32_u24 v4, 224, v{vG}
v_lshl_add_u32 v4, v{vN}, 4, v4
v_add_u32 v4, s{sT}, v4
s_lshl_b32 s{sT}, s{sWAVE}, 1
s_add_u32 s{sT+1}, s{sWAVE}, 7
s_min_u32 s{sT}, s{sT}, s{sT+1}
s_mul_i32 s{sT}, s{sT}, {X3S}
v_lshrrev_b32 v5, 2, v{vN}
v_add_u32 v5, v5, v{vG}
v_lshlrev_b32 v5, 4, v5
v_mul_u32_u24 v6, 96, v{vN}
v_add3_u32 v5, v5, v6, s{sT}
s_mov_b32 s{sVAL}, {M14[0]:#x}
s_cmp_lt_u32 s{sWAVE}, 7
s_cselect_b32 s{sVAL+1}, {M14[1]:#x}, 0""")
    E.wait(lg=0)
    if cfg.get("d2"): E(f"s_sleep {cfg['d2']}")
    poll_tagged(E, 4, vL, lambda i: E(f"buffer_load_dwordx4 {V(vL+4*i,4)}, v4, s[{sWS}:{sWS+3}], 0 offen offset:{896*i} sc1"), slp=cfg.get("slp", 2))
    C.stamp()
    transpose4(E, vL)
    for s in range(3):
        mfma(E, vA + 8*s, vL + 4*s, vF3)
        mfma(E, vA + 8*s + 4, vL + 4*s, vF3 + 4)
    tA, tB, tC = vT2, vL, vT2 + 18
    cmul_tw(E, aA, aA + 4, F(12), F(13), tA)
    cmul_tw(E, aC, aC + 4, F(14), F(15), tC)
    o0, o1 = vA, vA + 16
    cmul_tw(E, aB, aB + 4, F(12), F(13), tB)
    for mt in range(2):
        for h in range(2):
            mfma(E, o0 + 8*mt + 4*h, F(6*mt + h), tA)
    for mt in range(2):
        for h in range(2):
            mfma(E, o1 + 8*mt + 4*h, F(6*mt + h), tB)
    for mt in range(2):
        for h in range(2):
            mfma(E, o0 + 8*mt + 4*h, F(6*mt + 2 + h), tC, o0 + 8*mt + 4*h)
    for mt in range(2):
        for h in range(2):
            mfma(E, o1 + 8*mt + 4*h, F(6*mt + 4 + h), tC, o1 + 8*mt + 4*h)
    E(f"s_cmp_lt_u32 s{sWAVE}, 7")
    E.branch("s_cbranch_scc1", lab("nocadd"), keep=True)
    for mt in range(2):
        for h in (0, 2):
            E(f"v_pk_add_f32 {V(o0+8*mt+h,2)}, {V(o0+8*mt+h,2)}, {V(o1+8*mt+h,2)}")
            E(f"v_pk_add_f32 {V(o0+8*mt+4+h,2)}, {V(o0+8*mt+4+h,2)}, {V(o1+8*mt+4+h,2)} neg_lo:[0,1] neg_hi:[0,1]")
    E.label(lab("nocadd"), keep=True)
    for mt in range(2):
        for r in range(4):
            E(f"v_cvt_pk_bf16_f32 v{vL+4*mt+r}, v{o0+8*mt+r}, v{o0+8*mt+4+r}")
    E(f"ds_write_b128 v5, {V(vL,4)} offset:{L_X1}")
    for mt in range(2):
        for r in range(4):
            E(f"v_cvt_pk_bf16_f32 v{vL+8+4*mt+r}, v{o1+8*mt+r}, v{o1+8*mt+4+r}")
    setexec(E, 0xFFFF, 0)
    E(f"ds_write_b128 v5, {V(vL+4,4)} offset:{L_X1+64}")
    E(f"s_cmp_lt_u32 s{sWAVE}, 7")
    E.branch("s_cbranch_scc0", lab("p3_x"), keep=True)
    E(f"ds_write_b128 v5, {V(vL+12,4)} offset:{L_X1+X3S+64}")
    fullexec(E)
    E(f"ds_write_b128 v5, {V(vL+8,4)} offset:{L_X1+X3S}")
    E.label(lab("p3_x"), keep=True)
    fullexec(E)
    E.label(lab("p3_skip"), keep=True)
    E.waitf(lg=0)
    E.barrier()
    C.stamp()
    E(f"s_cmp_lt_u32 s{sWAVE}, 7")
    E.branch("s_cbranch_scc1", lab("end"), keep=True)
    for s in range(4):
        for j in range(4):
            E(f"ds_read_b32 v{vTB+4*s+j}, v{vT2+16} offset:{L_X1 + j*X3S + 96*s}")
    for s in range(4):
        mfma(E, vA + 8*s, vG1, vTB + 4*s)
        mfma(E, vA + 8*s + 4, vG1 + 4, vTB + 4*s)
    for s in range(4):
        for r in range(4):
            E(f"v_cvt_pk_bf16_f32 v{vL+4*r+s}, v{vA+8*s+r}, v{vA+8*s+4+r}")
    for r in range(4):
        E(f"buffer_store_dwordx4 {V(vL+4*r,4)}, v{vT2+17}, s[{sOUT}:{sOUT+3}], s{54+r} offen {cfg.get('outfl','')}")
    E(f"s_or_b32 s{sT}, s{sWA}, 0")
    E(f"s_cmp_lg_u32 s{sWA}, 0")
    E.branch("s_cbranch_scc1", lab("end"), keep=True)
    E(f"s_cmp_lg_u32 s{sWAVE}, 7")
    E.branch("s_cbranch_scc1", lab("end"), keep=True)
    E(f"v_mov_b32 v4, s{sTAG}\nv_mov_b32 v5, 0")
    setexec(E, 1, 0)
    E(f"buffer_store_dword v4, v5, s[{sWS}:{sWS+3}], 0 offen")
    fullexec(E)
    E.label(lab("end"), keep=True)
```

```python
from asmlib import *
from genA import *
import math

L_IMG = 0
L_U = 25600; US = 4608
L_K = 48640; KS = 3712
L_STG = 67200; STGW = 9216; RS = 288
L_S = L_STG; SS = 12920
L_DUMMY = 159360
UIN_S = 32 * 896
YIN_S = 20480
sUU, sPAR = 4, 12
sTT, sDG = 29, 31
T3OFF = 36 * 1024

def cmul(E, d, x, e, t):
    E(f"v_pk_mul_f32 {V(t,2)}, {V(x,2)}, {V(e,2)} op_sel:[0,0] op_sel_hi:[0,1]")
    E(f"v_pk_fma_f32 {V(d,2)}, {V(x,2)}, {V(e,2)}, {V(t,2)} op_sel:[1,1,0] op_sel_hi:[1,0,1] neg_lo:[1,0,0]")

def conv_unit(E, C, tiles, cfg, name):
    vT = 16
    vAc = 84
    vR = 116
    vO = 148
    NR = 6
    acc = {c: vAc + 4 * i for i, c in enumerate(tiles)}
    started = set()
    def mm(c, a, b):
        mfma(E, acc[c], a, b, acc[c] if c in started else None)
        started.add(c)
    def store(c):
        o = vO + 2 * (tiles.index(c) % 4)
        a = acc[c]
        E(f"v_cvt_pk_bf16_f32 v{o}, v{a}, v{a+1}")
        E(f"v_cvt_pk_bf16_f32 v{o+1}, v{a+2}, v{a+3}")
        E(f"v_min_u32 v{o}, -2, v{o}")
        E(f"s_add_u32 s55, s54, {c*4*YIN_S}")
        E(f"buffer_store_dwordx2 {V(o,2)}, v10, s[{sWS}:{sWS+3}], s55 offen sc1")
    mmax = lambda c: min(16, 8 * c + 7)
    ms = sorted({m for c in tiles for m in range(mmax(c) + 1)})
    sched = []
    for p in range(-7, 57):
        u = [(c, 8 * c - p) for c in tiles if 0 <= 8 * c - p <= mmax(c)]
        if u: sched.append((p, u))
    def rdT(m):
        if m == 16:
            E(f"v_subrev_u32 v11, 64, v5")
            E(f"ds_read2_b32 {V(vT+64,2)}, v11 offset0:0 offset1:1")
            E(f"ds_read2_b32 {V(vT+66,2)}, v11 offset0:2 offset1:3")
        else:
            d = 16 * (15 - m)
            E(f"ds_read2_b32 {V(vT+4*m,2)}, v5 offset0:{d} offset1:{d+1}")
            E(f"ds_read2_b32 {V(vT+4*m+2,2)}, v5 offset0:{d+2} offset1:{d+3}")
    def rdU(i):
        p = sched[i][0]
        E(f"ds_read_b128 {V(vR+4*(i%NR),4)}, v4 offset:{64*(p+7)}")
    first = {}
    for i, (p, u) in enumerate(sched):
        for c, m in u: first.setdefault(m, i)
    torder = sorted(ms, key=lambda m: first[m])
    AH = NR - 1
    tq = list(torder)
    for i in range(min(2, len(sched))): rdU(i)
    for _ in range(3):
        if tq: rdT(tq.pop(0))
    for i in range(2, min(AH, len(sched))): rdU(i)
    last_direct = {c: max(i for i, (p, u) in enumerate(sched) for cc, m in u if cc == c) for c in tiles}
    for i, (p, u) in enumerate(sched):
        while tq and first[tq[0]] <= i + 3:
            rdT(tq.pop(0))
        for k, (c, m) in enumerate(u):
            mm(c, vT + 4 * m, vR + 4 * (i % NR))
            if k == 0 and i + AH < len(sched):
                pass
        if i + AH < len(sched): rdU(i + AH)
        for c in tiles:
            if c < 2 and last_direct[c] == i - 2: store(c)
    for c in tiles:
        if c < 2 and last_direct[c] >= len(sched) - 2: store(c)
    C.stamp()
    dec = [c for c in tiles if c >= 2]
    g4 = sorted({rho for c in dec for rho in (2, 3, 4) if c - rho >= 0})
    g8 = sorted({16 * c - 32 * ks for c in dec if c >= 4 for ks in range(2) if 32 * ks <= 16 * c - 49})
    G = {}
    nx = vT
    for cls in range(2):
        for rho in g4:
            G[(4, cls, rho)] = nx; d = (128 - 32 * rho) // 2 + 64 * cls
            E(f"ds_read2_b32 {V(nx,2)}, v6 offset0:{d} offset1:{d+1}")
            E(f"ds_read2_b32 {V(nx+2,2)}, v6 offset0:{d+2} offset1:{d+3}")
            nx += 4
    for cls in range(2):
        for rel in g8:
            G[(8, cls, rel)] = nx; d = (112 - rel) // 2 + 96 * cls
            E(f"ds_read2_b32 {V(nx,2)}, v7 offset0:{d} offset1:{d+1}")
            E(f"ds_read2_b32 {V(nx+2,2)}, v7 offset0:{d+2} offset1:{d+3}")
            nx += 4
    big = [c for c in tiles if c >= 4]
    vCm = nx; nx += 4
    if big:
        E(f"ds_read_u16 v11, v156")
        for k, c in enumerate(big):
            E(f"ds_read_b128 {V(vR+4*(k%NR),4)}, v4 offset:{2*(256*c-1040+16)+448}")
        E(f"v_lshl_or_b32 v11, v11, 16, v11")
        for j in range(4): E(f"v_and_b32 v{vCm+j}, v11, v{12+j}")
        for k, c in enumerate(big):
            mm(c, vCm, vR + 4 * (k % NR))
    E.barrier()
    C.stamp()
    jobs = []
    for ks in range(6):
        for cls in range(2):
            u = [(c, G[(4, cls, c - ks)]) for c in dec if 2 <= c - ks <= 4]
            if u: jobs.append((8, cls, ks, u))
        if ks < 2:
            for cls in range(2):
                u = [(c, G[(8, cls, 16 * c - 32 * ks)]) for c in dec if c >= 4 and 32 * ks <= 16 * c - 49]
                if u: jobs.append((16, cls, ks, u))
    def rdS(i):
        om, cls, ks, u = jobs[i]
        r = vR + 4 * (i % NR)
        if om == 8:
            o = 3880 * cls + 640 * ks
            E(f"ds_read_b64_tr_b16 {V(r,2)}, v8 offset:{o}")
            E(f"ds_read_b64_tr_b16 {V(r+2,2)}, v8 offset:{o+80}")
        else:
            o = 7760 + 2600 * cls + 1280 * ks
            E(f"ds_read_b64_tr_b16 {V(r,2)}, v9 offset:{o}")
            E(f"ds_read_b64_tr_b16 {V(r+2,2)}, v9 offset:{o+160}")
    for i in range(min(AH, len(jobs))): rdS(i)
    lastj = {c: max(i for i, j in enumerate(jobs) for cc, _ in j[3] if cc == c) for c in dec}
    pend = []
    for i, (om, cls, ks, u) in enumerate(jobs):
        for c, g in u:
            mm(c, vR + 4 * (i % NR), g)
        if i + AH < len(jobs): rdS(i + AH)
        for c in list(pend):
            store(c); pend.remove(c)
        pend += [c for c in dec if lastj[c] == i]
    for c in pend: store(c)

def gen_B(E, C, cfg):
    lab = lambda s: "B_" + s
    E(f"""s_load_dwordx8 s[76:83], s[0:1], 32
s_load_dwordx8 s[84:91], s[0:1], 64
s_load_dwordx2 s[92:93], s[0:1], 96
s_and_b32 s{sTT}, s2, 31
s_bfe_u32 s{sDG}, s2, 0x20005
s_getpc_b64 s[{sTB}:{sTB+1}]""")
    E.raw("L_pcB:")
    E(f"""s_add_u32 s{sTB}, s{sTB}, L_table-L_pcB
s_addc_u32 s{sTB+1}, s{sTB+1}, 0
s_and_b32 s{sTB+1}, s{sTB+1}, 0xffff
s_mov_b32 s{sTB+2}, {41*1024}
s_mov_b32 s{sTB+3}, 0x00020000""")
    for i in range(2):
        E(f"""s_lshl_b32 s{sT}, s{sWAVE}, 6
s_add_u32 s{sT}, s{sT}, {768*i}
v_add_u32 v4, s{sT}, v{vLANE}
v_mul_u32_u24 v5, 3121, v4
v_lshrrev_b32 v5, 16, v5
v_mul_u32_u24 v6, 21, v5
v_sub_u32 v6, v4, v6
v_mul_u32_u24 v5, 1280, v5
v_lshl_add_u32 v5, v6, 4, v5
v_mov_b32 v7, 0x7ffffff0
v_cmp_gt_u32 vcc, 20, v6
v_cndmask_b32 v{8+i}, v7, v5, vcc""")
    E(f"""s_mul_i32 s{sT}, s{sTT}, {64*1280}
s_mul_i32 s{sT+1}, s{sDG}, 320
s_add_u32 s{sT}, s{sT}, s{sT+1}
s_lshl_b32 s{sT+1}, s{sWAVE}, 10""")
    E.waitf(lg=0)
    srd(E, sUU, 70, 71, 2621440)
    E(f"s_mov_b32 m0, s{sT+1}")
    E(f"buffer_load_dwordx4 v8, s[{sUU}:{sUU+3}], s{sT} offen lds")
    E(f"s_cmp_gt_u32 s{sWAVE}, 8")
    E.branch("s_cbranch_scc1", lab("no2"))
    E(f"s_add_u32 m0, s{sT+1}, 12288")
    E(f"buffer_load_dwordx4 v9, s[{sUU}:{sUU+3}], s{sT} offen lds")
    E.label(lab("no2"))
    srd(E, sWS, 72, 73, WS_BYTES)
    srd(E, sOUT, 92, 93, 2048 * 2560)
    E(f"""s_lshl_b32 s{sT}, s{sDG}, 8
s_add_u32 s{sT}, s{sT}, 256
s_add_u32 s94, s72, s{sT}
s_addc_u32 s95, s73, 0
s_load_dword s59, s[94:95], 0""")
    vP = 16
    for j in range(8): E(f"v_mov_b32 v{vP+j}, 0")
    E(f"""s_mul_i32 s{sT}, s{sDG}, 160
s_mul_i32 s{sT+1}, s{sTT}, 5
s_add_u32 s58, s{sT}, s{sT+1}
s_lshr_b32 s{sT+1}, s{sWAVE}, 1
s_min_u32 s{sT+1}, s{sT+1}, 4
s_add_u32 s{sT}, s58, s{sT+1}
s_lshl_b32 s{sT+2}, s{sT}, 1
s_lshl_b32 s{sT}, s{sT}, 8
s_and_b32 s{sT+1}, s{sWAVE}, 1
s_lshl_b32 s{sT+1}, s{sT+1}, 7
s_add_u32 s{sT}, s{sT}, s{sT+1}
v_lshlrev_b32 v4, 1, v{vLANE}
v_mov_b32 v5, 0
s_mov_b32 s{sPAR+3}, 0x00020000""")
    for j in range(8):
        lo = 76 + 2 * j
        d = sPAR if j % 2 == 0 else 16
        srd(E, d, lo, lo + 1, 163840 if j < 6 else 1280)
        if j < 6: E(f"buffer_load_short_d16_hi v{vP+j}, v4, s[{d}:{d+3}], s{sT} offen")
        else: E(f"buffer_load_short_d16_hi v{vP+j}, v5, s[{d}:{d+3}], s{sT+2} offen")
    E(f"""s_and_b32 s{sT}, s2, 127
s_mul_i32 s{sT}, s{sT}, {YIN_S}
s_add_u32 s57, s{sT}, {WS_YIN}
v_mov_b32 v24, -1
v_mov_b32 v25, -1
v_mov_b32 v26, -1
v_mov_b32 v27, -1
s_lshl_b32 s{sT}, s{sWAVE}, 11
v_lshl_add_u32 v6, v{vLANE}, 4, s{sT}
s_cmp_gt_u32 s{sWAVE}, 9""")
    E.branch("s_cbranch_scc1", lab("noclr"))
    E(f"buffer_store_dwordx4 v[24:27], v6, s[{sWS}:{sWS+3}], s57 offen sc1")
    E(f"buffer_store_dwordx4 v[24:27], v6, s[{sWS}:{sWS+3}], s57 offen offset:1024 sc1")
    E.label(lab("noclr"))
    E(f"""v_mov_b32 v28, 0
v_mov_b32 v29, 0
v_mov_b32 v30, 0
v_mov_b32 v31, 0
v_lshlrev_b32 v6, 4, v0
v_add_u32 v6, {L_K}, v6
ds_write_b128 v6, v[28:31]
v_cmp_gt_u32 vcc, {1160-768}, v0""")
    E("s_and_saveexec_b64 s[52:53], vcc")
    E(f"ds_write_b128 v6, v[28:31] offset:{768*16}")
    E("s_mov_b64 exec, s[52:53]")
    E(f"""v_mul_u32_u24 v6, 2185, v0
v_lshrrev_b32 v6, 16, v6
v_mul_u32_u24 v7, {US-480}, v6
v_lshl_add_u32 v7, v0, 4, v7
v_add_u32 v7, {L_U}, v7
v_cmp_gt_u32 vcc, 150, v0""")
    E("s_and_saveexec_b64 s[52:53], vcc")
    E(f"ds_write_b128 v7, v[28:31]")
    E("s_mov_b64 exec, s[52:53]")
    E(f"""v_and_b32 v4, 3, v{vLANE}
v_lshl_add_u32 v5, v{vG}, 2, v4
v_mul_u32_u24 v5, 3, v5
v_lshrrev_b32 v5, 1, v5
v_bfe_u32 v6, v{vLANE}, 2, 2
v_lshl_add_u32 v5, v5, 2, v6
v_mul_u32_u24 v8, 336, v5
s_lshl_b32 s{sT}, s{sWAVE}, 3
v_add_u32 v8, s{sT}, v8
v_lshl_add_u32 v9, v{vG}, 2, v6
v_lshlrev_b32 v10, 4, v9
s_mul_i32 s56, s{sDG}, {32*UIN_S}
s_mul_i32 s{sT}, s{sTT}, 896
s_add_u32 s56, s56, s{sT}
s_add_u32 s56, s56, {WS_UIN}
s_lshl_b32 s{sT}, s{sWAVE}, 2
s_mov_b32 s{sT+1}, {UIN_S}""")
    for i in range(4):
        E(f"""v_add_u32 v5, s{sT}, v4
v_add_u32 v5, {48*i}, v5
v_mul_u32_u24 v6, 13108, v5
v_lshrrev_b32 v6, 16, v6
v_mul_u32_u24 v7, 5, v6
v_sub_u32 v5, v5, v7
v_mul_lo_u32 v6, s{sT+1}, v6
v_mul_u32_u24 v5, 176, v5
v_add3_u32 v{12+i}, v5, v6, v10""")
    E(f"v_cmp_gt_u32 s[{sVAL}:{sVAL+1}], 11, v9")
    E(f"s_mov_b32 s52, 0xf0f0f0f0\ns_mov_b32 s53, 0xf0f0f0f0")
    E.barrier(vm=True)
    C.stamp()
    E(f"s_add_u32 s{sTAG}, s59, 1")
    vB = 32
    nq = 4
    for i in range(nq):
        if i == 3:
            E(f"s_cmp_gt_u32 s{sWAVE}, 3")
            E.branch("s_cbranch_scc1", lab("q3a"))
        E(f"ds_read_b64_tr_b16 {V(vB+8*i,2)}, v8 offset:{96*i}")
        E(f"ds_read_b64_tr_b16 {V(vB+8*i+2,2)}, v8 offset:{96*i+1344}")
        if i == 3: E.label(lab("q3a"))
    for i in range(nq):
        if i == 3:
            E(f"s_cmp_gt_u32 s{sWAVE}, 3")
            E.branch("s_cbranch_scc1", lab("q3b"))
        a = vB + 8 * i
        E(f"v_mov_b32 v{a+7}, s{sTAG}")
        E(f"v_cndmask_b32 v{a+4}, v{a}, v{a+1}, s[52:53]")
        E(f"v_cndmask_b32 v{a+5}, v{a+1}, v{a+2}, s[52:53]")
        E(f"v_cndmask_b32 v{a+6}, v{a+2}, v{a+3}, s[52:53]")
        E(f"s_mov_b64 exec, s[{sVAL}:{sVAL+1}]")
        E(f"buffer_store_dwordx4 {V(a+4,4)}, v{12+i}, s[{sWS}:{sWS+3}], s56 offen sc1")
        fullexec(E)
        if i == 3: E.label(lab("q3b"))
    C.stamp()
    vD = 64
    E(f"s_cmp_gt_u32 s{sWAVE}, 9")
    E.branch("s_cbranch_scc1", lab("kg_skip"))
    L2E = 1.4426950408889634
    l2e_hi = struct.unpack("<f", struct.pack("<f", L2E))[0]
    l2e_lo = L2E - l2e_hi
    Are, Aim, Bre, Bim, Cre, Cim, ldt, Dsk = [vP + j for j in range(8)]
    E1, E8, E128, E2, E256, CB = 32, 34, 36, 38, 40, 42
    X, Y, T1, T2, F_ = 44, 46, 48, 50, 52
    E(f"""s_mov_b32 s{sT}, {fbits(l2e_hi)}
v_mul_f32 v4, s{sT}, v{ldt}
v_fma_f32 v5, v{ldt}, s{sT}, -v4
v_fmac_f32 v5, {fbits(l2e_lo)}, v{ldt}
v_exp_f32 v4, v4
v_mul_f32 v5, {fbits(math.log(2.0))}, v5
v_fmac_f32 v4, v4, v5
v_cvt_pk_bf16_f32 v4, v4, v4
v_and_b32 v4, 0xffff0000, v4
v_mul_f32 v{Are}, v4, v{Are}
v_mul_f32 v{Aim}, v4, v{Aim}
v_mul_f32 v{Bre}, v4, v{Bre}
v_mul_f32 v{Bim}, v4, v{Bim}
v_mul_f32 v{Are}, s{sT}, v{Are}
v_mul_f32 v{Aim}, 0.15915494, v{Aim}""")
    for k, (e, p) in enumerate(((E8, 8.0), (E1, 1.0), (E128, 128.0))):
        E(f"""v_mul_f32 v{54+k}, {fbits(p)}, v{Are}
v_mul_f32 v{57+k}, {fbits(p)}, v{Aim}
v_fract_f32 v{57+k}, v{57+k}""")
    for k, (e, p) in enumerate(((E8, 8.0), (E1, 1.0), (E128, 128.0))):
        E(f"""v_exp_f32 v{54+k}, v{54+k}
v_cos_f32 v{e}, v{57+k}
v_sin_f32 v{e+1}, v{57+k}""")
    cmul(E, CB, Cre, Bre, T1)
    for k, (e, p) in enumerate(((E8, 8.0), (E1, 1.0), (E128, 128.0))):
        E(f"v_mul_f32 v{e}, v{54+k}, v{e}\nv_mul_f32 v{e+1}, v{54+k}, v{e+1}")
    E(f"""s_mul_i32 s{sT}, s{sWAVE}, {STGW}
s_add_u32 s{sT}, s{sT}, {L_STG}
v_lshl_add_u32 v4, v{vLANE}, 2, s{sT}
v_mul_u32_u24 v5, {RS}, v{vN}
v_min_u32 v6, 8, v{vN}
v_mul_u32_u24 v6, {RS}, v6
v_lshl_add_u32 v7, v{vG}, 4, s{sT}
v_add_u32 v5, v5, v7
v_add_u32 v6, v6, v7
v_mov_b32 v7, 0x3f80""")
    cnt = [0]
    def put(src, buf, row, negim=False):
        o = 60 + cnt[0] % 4; cnt[0] += 1
        E(f"v_cvt_pk_bf16_f32 v{o}, v{src}, {'-' if negim else ''}v{src+1}")
        E(f"ds_write_b32 v4, v{o} offset:{buf*16*RS + row*RS}")
    E(f"ds_write_b32 v4, v7 offset:0")
    put(E8, 0, 1, True)
    put(CB, 1, 0)
    cmul(E, Y, CB, E128, T2); put(Y, 1, 8)
    fsrc = E8; xsrc = CB
    for s in range(14):
        cmul(E, F_, fsrc, E8, T1); fsrc = F_
        if s < 7:
            cmul(E, X, xsrc, E1, T2); xsrc = X
        put(F_, 0, s + 2, True)
        if s < 7:
            put(X, 1, s + 1)
            cmul(E, Y, X, E128, T2); put(Y, 1, s + 9)
        if s == 8: cmul(E, E2, E1, E1, T2)
        if s == 9: cmul(E, E256, E128, E128, T2)
        if s == 10: cmul(E, X, CB, E256, T2)
    vFi, vCo = 76, 92
    for ks in range(4): E(f"ds_read_b128 {V(vFi+4*ks,4)}, v5 offset:{64*ks}")
    for ks in range(4): E(f"ds_read_b128 {V(vCo+4*ks,4)}, v5 offset:{16*RS + 64*ks}")
    P = [108 + 2 * i for i in range(9)]
    E(f"v_mov_b32 v{P[0]}, v{X}\nv_mov_b32 v{P[0]+1}, v{X+1}")
    cmul(E, P[4], P[0], E128, T1)
    for r in range(1, 4):
        cmul(E, P[r], P[r-1], E2, T2)
        cmul(E, P[4+r], P[r], E128, T1)
    cmul(E, P[8], P[4], E8, T2)
    E.wait(lg=0)
    for ks in range(4):
        mfma(E, vD, vCo + 4*ks, vFi + 4*ks, vD if ks else None)
    for r in range(9): put(P[r], 0, r)
    cmul(E, X, P[8], E128, T1)
    cmul(E, Y, P[6], E128, T2)
    put(X, 1, 0); put(Y, 1, 12)
    for k in range(1, 12):
        cmul(E, X, X, E128, T1)
        if k < 4: cmul(E, Y, Y, E128, T2)
        put(X, 1, k)
        if k < 4: put(Y, 1, 12 + k)
        if k == 4:
            for ks in range(4): E(f"ds_read_b128 {V(vCo+4*ks,4)}, v6 offset:{64*ks}")
        if k == 8:
            for ks in range(4): mfma(E, vD + 4, vCo + 4*ks, vFi + 4*ks, vD + 4 if ks else None)
    for ks in range(4): E(f"ds_read_b128 {V(vCo+4*ks,4)}, v5 offset:{16*RS + 64*ks}")
    for ks in range(4): mfma(E, vD + 8, vCo + 4*ks, vFi + 4*ks, vD + 8 if ks else None)
    E(f"""s_mul_i32 s{sT}, s{sWAVE}, {STGW}
s_add_u32 s{sT}, s{sT}, {L_STG}
v_lshl_add_u32 v4, v{vLANE}, 4, s{sT}""")
    for i in range(3):
        E(f"ds_write_b128 v4, {V(vD+4*i,4)} offset:{1024*i}")
    E.label(lab("kg_skip"))
    C.stamp()
    vL = 32
    for i in range(3):
        E(f"""s_lshl_b32 s{sT}, s{sWAVE}, 6
s_add_u32 s{sT}, s{sT}, {768*i}
v_add_u32 v5, s{sT}, v{vLANE}
v_mul_u32_u24 v6, 18725, v5
v_lshrrev_b32 v6, 20, v6
v_mul_u32_u24 v7, 56, v6
v_sub_u32 v7, v5, v7
v_cmp_gt_u32 vcc, 1792, v5
v_cmp_gt_u32 s[52:53], 55, v7
s_and_b64 s[{96+2*i}:{97+2*i}], vcc, s[52:53]
v_mul_u32_u24 v8, 5958, v7
v_lshrrev_b32 v8, 16, v8
v_mul_u32_u24 v9, 11, v8
v_sub_u32 v7, v7, v9
v_mul_u32_u24 v8, {US}, v8
v_lshl_add_u32 v8, v6, 7, v8
v_mul_u32_u24 v9, 12, v7
v_add3_u32 v{44+2*i}, v8, v9, s{sT+4}
v_mov_b32 v9, {L_DUMMY}
v_add_u32 v8, 8, v{44+2*i}
v_cmp_eq_u32 vcc, 10, v7
v_cndmask_b32 v{45+2*i}, v8, v9, vcc""".replace(f"s{sT+4}", f"s{sT+4}") if i else f"s_mov_b32 s{sT+4}, {L_U+480}\n" + f"""s_lshl_b32 s{sT}, s{sWAVE}, 6
v_add_u32 v5, s{sT}, v{vLANE}
v_mul_u32_u24 v6, 18725, v5
v_lshrrev_b32 v6, 20, v6
v_mul_u32_u24 v7, 56, v6
v_sub_u32 v7, v5, v7
v_cmp_gt_u32 s[96:97], 55, v7
v_mul_u32_u24 v8, 5958, v7
v_lshrrev_b32 v8, 16, v8
v_mul_u32_u24 v9, 11, v8
v_sub_u32 v7, v7, v9
v_mul_u32_u24 v8, {US}, v8
v_lshl_add_u32 v8, v6, 7, v8
v_mul_u32_u24 v9, 12, v7
v_add3_u32 v44, v8, v9, s{sT+4}
v_mov_b32 v9, {L_DUMMY}
v_add_u32 v8, 8, v44
v_cmp_eq_u32 vcc, 10, v7
v_cndmask_b32 v45, v8, v9, vcc""")
    E(f"""s_and_b32 s{sT}, s2, 127
s_mul_i32 s{sT}, s{sT}, {UIN_S}
s_add_u32 s56, s{sT}, {WS_UIN}
s_add_u32 s55, s56, 12288
s_add_u32 s54, s56, 24576
s_lshl_b32 s{sT}, s{sWAVE}, 10
v_lshl_add_u32 v10, v{vLANE}, 4, s{sT}""")
    E.barrier()
    C.stamp()
    E(f"s_cmp_gt_u32 s{sWAVE}, 9")
    E.branch("s_cbranch_scc1", lab("sc_skip"))
    E(f"""s_xor_b32 s{sT}, s{sWAVE}, 1
s_mul_i32 s{sT}, s{sT}, {STGW}
s_add_u32 s{sT}, s{sT}, {L_STG}
v_lshl_add_u32 v4, v{vLANE}, 4, s{sT}
s_lshr_b32 s{sT+1}, s{sWAVE}, 1
s_mul_i32 s{sT+1}, s{sT+1}, {KS}
s_add_u32 s{sT+1}, s{sT+1}, {L_K}
s_bitcmp1_b32 s{sWAVE}, 0""")
    E.branch("s_cbranch_scc1", lab("sc_h1"))
    E(f"ds_read_b128 v[76:79], v4")
    E(f"""v_lshrrev_b32 v5, 1, v{vG}
v_lshlrev_b32 v5, 8, v5
v_and_b32 v6, 1, v{vG}
v_lshl_add_u32 v5, v6, 3, v5
v_lshl_add_u32 v5, v{vN}, 4, v5
s_add_u32 s{sT+1}, s{sT+1}, {2*(544-3)}
v_sub_u32 v5, s{sT+1}, v5
v_cmp_eq_u32 vcc, 0, v{vLANE}
v_cndmask_b32 v6, 0, v{Dsk}, vcc
v_add_f32 v{vD}, v{vD}, v6""")
    for r in range(4): E(f"v_add_f32 v{vD+r}, v{vD+r}, v{76+r}")
    E(f"v_cvt_pk_bf16_f32 v76, v{vD}, v{vD+1}\nv_cvt_pk_bf16_f32 v77, v{vD+2}, v{vD+3}")
    for r in range(4):
        op = "ds_write_b16" if r % 2 == 0 else "ds_write_b16_d16_hi"
        E(f"{op} v5, v{76+r//2} offset:{2*(3-r)}")
        E(f"{op} v5, v{76+r//2} offset:{2*(3-r)+1214}")
    E.branch("s_branch", lab("sc_skip"))
    E.label(lab("sc_h1"))
    E(f"ds_read_b128 v[76:79], v4 offset:1024")
    E(f"ds_read_b128 v[80:83], v4 offset:2048")
    E(f"""v_lshlrev_b32 v5, 8, v{vG}
v_lshl_add_u32 v5, v{vN}, 4, v5
v_cmp_eq_u32 vcc, 2, v{vG}
v_subrev_u32 v6, 240, v5
v_cndmask_b32 v5, v5, v6, vcc
s_add_u32 s{sT+2}, s{sT+1}, {2*(544-256-7)}
v_sub_u32 v5, s{sT+2}, v5""")
    E(f"""v_lshlrev_b32 v6, 1, v{vN}
v_sub_u32 v6, {2368+194}, v6
v_add_u32 v7, 256, v6
v_cmp_eq_u32 vcc, 3, v{vG}
v_cndmask_b32 v6, v6, v7, vcc
v_and_b32 v7, 14, v{vN}
v_lshl_add_u32 v7, v{vG}, 6, v7
v_sub_u32 v7, {2880+192}, v7
v_and_b32 v8, 1, v{vN}
v_xor_b32 v8, 1, v8
v_mul_u32_u24 v8, 384, v8
v_add_u32 v7, v7, v8
v_add_u32 v8, -1, v{vG}
v_cmp_gt_u32 vcc, 2, v8
v_cndmask_b32 v6, v6, v7, vcc
v_mov_b32 v7, 32
v_cndmask_b32 v7, v7, 16, vcc
v_add_u32 v6, s{sT+1}, v6
v_sub_u32 v8, v6, v7
v_sub_u32 v9, v8, v7
v_sub_u32 v11, v9, v7""")
    for r in range(8): E(f"v_add_f32 v{vD+4+r}, v{vD+4+r}, v{76+r}")
    for j in range(4): E(f"v_cvt_pk_bf16_f32 v{76+j}, v{vD+4+2*j}, v{vD+5+2*j}")
    def w16(r, reg, addr, off):
        op = "ds_write_b16" if r % 2 == 0 else "ds_write_b16_d16_hi"
        E(f"{op} v{addr}, v{reg} offset:{off}")
    setexec(E, 0xFFFFFFFE, 0x8000)
    for cp in (0, 1214): w16(0, 76, 5, 2 * (7 + 1) + cp)
    setexec(E, 0xFFFFFFFF, 0x8000)
    for cp in (0, 1214):
        w16(0, 76, 5, 2 * 7 + cp); w16(0, 76, 5, 2 * 6 + cp)
        w16(1, 76, 5, 2 * 5 + cp)
    setexec(E, 0xFFFFFFFF, 0)
    for cp in (0, 1214):
        for d in (3, 4, 5): w16(2, 77, 5, 2 * (7 - d) + cp)
        w16(3, 77, 5, 2 * 1 + cp)
    fullexec(E)
    for r, a in enumerate((6, 8, 9, 11)): w16(r, 78 + r // 2, a, 0)
    setexec(E, 0xFFFF0000, 0x0000FFFF)
    for r, a in enumerate((6, 8, 9, 11)): w16(r, 78 + r // 2, a, 190)
    fullexec(E)
    E.label(lab("sc_skip"))
    C.stamp()
    if cfg.get("d3"): E(f"s_sleep {cfg['d3']}")
    poll_tagged(E, 3, vL, lambda i: E(f"buffer_load_dwordx4 {V(vL+4*i,4)}, v10, s[{sWS}:{sWS+3}], s{56-i} offen sc1"),
                slp=cfg.get("slp", 2), valids=[96, 98, 100])
    C.stamp()
    for i in range(3):
        E(f"s_mov_b64 exec, s[{96+2*i}:{97+2*i}]")
        E(f"ds_write2_b32 v{44+2*i}, v{vL+4*i}, v{vL+4*i+1} offset0:0 offset1:1")
        E(f"ds_write_b32 v{45+2*i}, v{vL+4*i+2}")
    fullexec(E)
    E(f"""s_min_u32 s{sT}, s{sWAVE}, 4
s_mul_i32 s{sT+1}, s{sT}, {US}
s_add_u32 s{sT+1}, s{sT+1}, {L_U}
v_lshlrev_b32 v4, 5, v{vN}
v_lshl_add_u32 v4, v{vG}, 4, v4
v_add_u32 v4, s{sT+1}, v4
s_mul_i32 s{sT+1}, s{sT}, {KS}
s_add_u32 s{sT+1}, s{sT+1}, {L_K}
v_lshlrev_b32 v11, 4, v{vG}
v_and_b32 v7, 1, v{vN}
v_mul_u32_u24 v5, 1214, v7
v_add3_u32 v5, v5, v11, s{sT+1}
v_lshlrev_b32 v8, 1, v{vN}
v_sub_u32 v5, v5, v8
v_add_u32 v5, {2*528-960}, v5
v_mul_u32_u24 v7, 190, v7
v_add3_u32 v7, v7, v11, s{sT+1}
v_sub_u32 v7, v7, v8
v_add_u32 v7, {2880+256-224}, v7
v_lshlrev_b32 v8, 2, v{vN}
v_sub_u32 v6, v11, v8
v_add_u32 v6, s{sT+1}, v6
v_add_u32 v6, {2368+320-256}, v6
s_add_u32 s{sT+1}, s{sT+1}, {2368+68}
v_mov_b32 v156, s{sT+1}
s_mul_i32 s{sT+1}, s{sT}, {SS}
s_add_u32 s{sT+1}, s{sT+1}, {L_S}
v_bfe_u32 v11, v{vLANE}, 2, 2
v_and_b32 v10, 3, v{vLANE}
v_lshl_add_u32 v8, v11, 1, v10
v_lshrrev_b32 v9, 2, v8
v_mul_u32_u24 v9, 40, v9
v_and_b32 v8, 3, v8
v_lshl_add_u32 v8, v8, 3, v9
v_mul_u32_u24 v9, 160, v{vG}
v_add3_u32 v8, v8, v9, s{sT+1}
v_lshl_add_u32 v9, v{vG}, 3, v11
v_mul_u32_u24 v9, 40, v9
v_lshl_add_u32 v9, v10, 3, v9
v_add_u32 v9, s{sT+1}, v9
v_lshrrev_b32 v10, 2, v{vN}
v_mul_u32_u24 v10, {YIN_S}, v10
v_and_b32 v11, 3, v{vN}
v_lshl_add_u32 v10, v11, 5, v10
v_lshl_add_u32 v10, v{vG}, 3, v10
s_mul_i32 s{sT+1}, s{sTT}, 5
s_add_u32 s{sT+1}, s{sT+1}, s{sT}
s_lshl_b32 s{sT+1}, s{sT+1}, 7
s_mul_i32 s54, s{sDG}, {32*YIN_S}
s_add_u32 s54, s54, s{sT+1}
s_add_u32 s54, s54, {WS_YIN}
v_lshlrev_b32 v11, 4, v{vLANE}
s_mov_b32 s{sT}, {T3OFF}""")
    E(f"buffer_load_dwordx4 v[12:15], v11, s[{sTB}:{sTB+3}], s{sT} offen offset:4095".replace("offset:4095", "") .replace(f"s{sT} offen", f"s{sT} offen") if False else f"s_add_u32 s{sT+1}, s{sT}, 4096\nbuffer_load_dwordx4 v[12:15], v11, s[{sTB}:{sTB+3}], s{sT+1} offen")
    E(f"s_cmp_lt_u32 s{sWAVE}, 8")
    E.branch("s_cbranch_scc1", lab("noband"))
    for j in range(4):
        E(f"buffer_load_dwordx4 {V(16+4*j,4)}, v11, s[{sTB}:{sTB+3}], s{sT} offen offset:{1024*j}")
    E.label(lab("noband"))
    E.barrier()
    C.stamp()
    ns0 = C.ns
    E(f"s_cmp_gt_u32 s{sWAVE}, 7")
    E.branch("s_cbranch_scc1", lab("pre"))
    E(f"s_cmp_gt_u32 s{sWAVE}, 3")
    E.branch("s_cbranch_scc1", lab("quart"))
    conv_unit(E, C, list(range(8)), cfg, "w")
    E.branch("s_branch", lab("cdone"))
    E.label(lab("quart"))
    Q = [[0, 7], [1, 6], [2, 5], [3, 4]]
    for k in range(4):
        if k < 3:
            E(f"s_cmp_lg_u32 s{sWAVE}, {4+k}")
            E.branch("s_cbranch_scc1", lab(f"q{k+1}"))
        C.ns = ns0
        conv_unit(E, C, Q[k], cfg, f"q{k}")
        E.branch("s_branch", lab("cdone"))
        if k < 3: E.label(lab(f"q{k+1}"))
    E.label(lab("pre"))
    C.ns = ns0
    jobs = [(ch, cp) for cp in range(6) for ch in range(5)]
    E(f"""v_lshlrev_b32 v4, 5, v{vN}
v_lshl_add_u32 v4, v{vG}, 4, v4
v_add_u32 v4, {L_U+448}, v4
v_mul_u32_u24 v5, 40, v{vN}
v_lshl_add_u32 v6, v{vG}, 3, v5
v_add_u32 v6, {L_S}, v6
v_add_u32 v5, 16, v6
v_add_u32 v7, 24, v6
v_cmp_gt_u32 vcc, 2, v{vG}
v_cndmask_b32 v5, v7, v5, vcc
v_mov_b32 v8, 0
v_mov_b32 v9, 0
s_sub_u32 s{sT}, s{sWAVE}, 8""")
    E(f"""v_mul_u32_u24 v10, 43, v{vLANE}
v_lshrrev_b32 v10, 8, v10
v_mul_u32_u24 v11, 6, v10
v_sub_u32 v11, v{vLANE}, v11
v_mul_u32_u24 v10, {SS}, v10
v_lshrrev_b32 v12, 1, v11
v_mul_u32_u24 v12, 3880, v12
v_and_b32 v11, 1, v11
v_lshl_add_u32 v10, v11, 3, v10
v_add3_u32 v10, v10, v12, {L_S}""".replace(f", {L_S}", f", s{sT+1}").replace("v_mul_u32_u24 v10, 43", f"s_mov_b32 s{sT+1}, {L_S}\nv_mul_u32_u24 v10, 43"))
    setexec(E, 0x3FFFFFFF, 0)
    E("ds_write_b64 v10, v[8:9]")
    fullexec(E)
    for wv in range(4):
        if wv < 3:
            E(f"s_cmp_lg_u32 s{sT}, {wv}")
            E.branch("s_cbranch_scc1", lab(f"pre{wv+1}"))
        mine = [jobs[i] for i in range(30) if ((i % 4) + (i // 20)) % 4 == wv]
        for i, (ch, cp) in enumerate(mine):
            E(f"ds_read_b128 {V(32+4*i,4)}, v4 offset:{ch*US + 512*cp}")
        k = 0
        res = []
        for i, (ch, cp) in enumerate(mine):
            for a in range(4 if cp < 4 else 2):
                d = 64 + 4 * (k % 16); k += 1
                mfma(E, d, 16 + 4 * a, 32 + 4 * i)
                res.append((d, ch, cp, a))
                if len(res) > 3:
                    d2, ch2, cp2, a2 = res.pop(0)
                    emit_S(E, d2, ch2, cp2, a2, k)
        for d2, ch2, cp2, a2 in res:
            k += 1
            emit_S(E, d2, ch2, cp2, a2, k)
        E.branch("s_branch", lab("pre_done"))
        if wv < 3: E.label(lab(f"pre{wv+1}"))
    E.label(lab("pre_done"))
    C.stamp()
    E.barrier()
    C.stamp()
    E(f"""s_sub_u32 s{sT}, s{sWAVE}, 8
s_mul_i32 s{sT+1}, s{sT}, 5120
v_lshl_add_u32 v4, v{vLANE}, 4, s{sT+1}
v_add_u32 v5, 4096, v4
s_mul_i32 s{sT+1}, s{sT}, {40*160}
v_lshrrev_b32 v6, 3, v{vLANE}
v_mul_u32_u24 v6, 160, v6
v_and_b32 v7, 7, v{vLANE}
v_lshl_add_u32 v6, v7, 4, v6
v_add_u32 v6, s{sT+1}, v6
s_mov_b64 s[96:97], -1""")
    if cfg.get("d4"): E(f"s_sleep {cfg['d4']}")
    poll_tagged(E, 5, 32, lambda i: E(f"buffer_load_dwordx4 {V(32+4*i,4)}, v{4 if i < 4 else 5}, s[{sWS}:{sWS+3}], s57 offen offset:{1024*(i%4)} sc1"),
                slp=cfg.get("slp4", 4), tagreg=lambda d: [d, d + 2], tagval="-1", ne=False, valids=[96] * 5)
    for i in range(5):
        E(f"ds_write_b128 v6, {V(32+4*i,4)} offset:{L_IMG + 1280*i}")
    E.label(lab("cdone"))
    C.stamp()
    E(f"""v_bfe_u32 v5, v{vLANE}, 2, 2
v_lshl_add_u32 v5, v{vG}, 3, v5
v_mul_u32_u24 v5, 160, v5
v_and_b32 v6, 3, v{vLANE}
v_lshl_add_u32 v5, v6, 3, v5
v_mul_u32_u24 v6, 2560, v{vN}
v_lshl_add_u32 v6, v{vG}, 4, v6
s_mul_i32 s54, s{sTT}, {64*2560}
s_mul_i32 s{sT}, s{sDG}, 320
s_add_u32 s54, s54, s{sT}
s_add_u32 s54, s54, 1280
s_and_b32 s{sT}, s{sWAVE}, 3
s_lshr_b32 s{sT+1}, s{sWAVE}, 2
s_lshl_b32 s{sT+2}, s{sT}, 5
s_mul_i32 s{sT+3}, s{sT+1}, {32*160}
s_add_u32 s{sT+2}, s{sT+2}, s{sT+3}
v_add_u32 v5, s{sT+2}, v5
s_mul_i32 s{sT}, s{sT}, {16*2560}
s_lshl_b32 s{sT+1}, s{sT+1}, 6
s_add_u32 s54, s54, s{sT}
s_add_u32 s54, s54, s{sT+1}""")
    E.barrier()
    C.stamp()
    E(f"ds_read_b64_tr_b16 v[16:17], v5 offset:{L_IMG}")
    E(f"ds_read_b64_tr_b16 v[18:19], v5 offset:{L_IMG+640}")
    E(f"s_cmp_gt_u32 s{sWAVE}, 7")
    E.branch("s_cbranch_scc1", lab("o1"))
    E(f"ds_read_b64_tr_b16 v[20:21], v5 offset:{L_IMG+3*32*160}")
    E(f"ds_read_b64_tr_b16 v[22:23], v5 offset:{L_IMG+3*32*160+640}")
    E(f"buffer_store_dwordx4 v[20:23], v6, s[{sOUT}:{sOUT+3}], s54 offen offset:192 {cfg.get('outfl','')}")
    E.label(lab("o1"))
    E(f"buffer_store_dwordx4 v[16:19], v6, s[{sOUT}:{sOUT+3}], s54 offen {cfg.get('outfl','')}")
    E(f"s_or_b32 s{sT}, s{sTT}, s{sWAVE}")
    E(f"s_cmp_lg_u32 s{sT}, 0")
    E.branch("s_cbranch_scc1", lab("end"))
    E(f"""s_lshl_b32 s{sT}, s{sDG}, 8
s_add_u32 s{sT}, s{sT}, 256
v_mov_b32 v4, s{sTAG}
v_mov_b32 v5, 0""")
    setexec(E, 1, 0)
    E(f"buffer_store_dword v4, v5, s[{sWS}:{sWS+3}], s{sT} offen")
    fullexec(E)
    E.label(lab("end"))

def emit_S(E, d, ch, cp, a, k):
    o = 128 + 2 * (k % 8)
    E(f"v_cvt_pk_bf16_f32 v{o}, v{d}, v{d+1}")
    E(f"v_cvt_pk_bf16_f32 v{o+1}, v{d+2}, v{d+3}")
    off = ch * SS + (0, 3880, 7760, 10360)[a] + 640 * cp
    E(f"ds_write_b64 v{6 if a == 3 else 5}, {V(o,2)} offset:{off}")
```

```python
import numpy as np
from emu import rbf
def bfbits(x):
    return (rbf(np.asarray(x, np.float32)).view(np.uint32) >> 16).astype(np.uint32)
def w(N, e): return np.exp(-2j * np.pi * (e % N) / N)
def pair(fn):
    re = np.zeros((64, 4), np.uint32); im = np.zeros((64, 4), np.uint32)
    for l in range(64):
        for jj in range(4):
            F = complex(fn(l & 15, l >> 4, jj))
            fr, fi = round(F.real, 12), round(F.imag, 12)
            re[l, jj] = bfbits(fr) | (bfbits(-fi) << 16)
            im[l, jj] = bfbits(fi) | (bfbits(fr) << 16)
    return [re, im]
def twid(fn):
    c = np.zeros((64, 4), np.float32); s = np.zeros((64, 4), np.float32)
    for l in range(64):
        for r in range(4):
            F = complex(fn(l & 15, l >> 4, r))
            c[l, r] = F.real; s[l, r] = F.imag
    return [c.view(np.uint32), s.view(np.uint32)]
def kA(n): return n if n < 14 else None
def kC(n): return 14 + n if n < 7 else (n + 7 if n < 14 else None)
def tbl1():
    t = []
    t += pair(lambda n, g, jj: w(20, (4*g+jj) * n) if n < 14 else 0)
    t += pair(lambda n, g, jj: w(20, (16+jj) * n) if (n < 14 and g == 0) else 0)
    t += pair(lambda n, g, jj: w(20, (16+jj) * n) if (n < 14 and g == 1) else 0)
    t += pair(lambda n, g, jj: w(20, (4*g+jj) * (14+n)) if n < 7 else 0)
    t += pair(lambda n, g, jj: w(20, (4*g+jj) * (n+7)) if 7 <= n < 14 else 0)
    t += pair(lambda n, g, jj: w(20, (16+jj) * kC(n)) if ((n < 7 and g == 0) or (7 <= n < 14 and g == 1)) else 0)
    t += twid(lambda n, g, r: w(320, (4*g+r) * n) if n < 14 else 0)
    t += twid(lambda n, g, r: w(320, (4*g+r) * kC(n)) if n < 14 else 0)
    return t
def tbl2():
    t = []
    def fwd(m, g, jj):
        gm, c2p, kap = m >> 2, (m >> 1) & 1, m & 1
        kb = 2 * gm + kap
        c2, b = g >> 1, 4 * (g & 1) + jj
        return w(8, b * kb) if c2p == c2 else 0
    def inv(n, g, jj):
        c2p, b = n >> 3, n & 7
        c2, kb = jj >> 1, 2 * g + (jj & 1)
        return np.conj(w(8, b * kb)) if c2p == c2 else 0
    t += pair(fwd); t += pair(inv)
    cw = lambda N, e: np.conj(w(N, e))
    for base, lim in ((0, 16), (16, 4)):
        t += pair(lambda m, g, jj: cw(20, (base+m) * (4*g+jj)) if (m < lim and 4*g+jj < 14) else 0)
        t += pair(lambda m, g, jj: cw(20, (base+m) * (14+4*g+jj)) if (m < lim and 4*g+jj < 7) else 0)
        t += pair(lambda m, g, jj: cw(20, (base+m) * (7+4*g+jj)) if (m < lim and 7 <= 4*g+jj < 14) else 0)
    t += twid(lambda n, g, r: cw(320, n * (4*g+r)) if 4*g+r < 14 else 0)
    t += twid(lambda n, g, r: cw(320, n * kC(4*g+r)) if 4*g+r < 14 else 0)
    return t
def as_asm(frags):
    out = []
    for f in frags:
        flat = np.asarray(f, np.uint32).reshape(-1)
        for i in range(0, 256, 8):
            out.append(".long " + ",".join("0x%x" % v for v in flat[i:i+8]))
    return "\n".join(out) + "\n"
if __name__ == "__main__":
    print(len(tbl1()), len(tbl2()), len(as_asm(tbl1() + tbl2())))

def tbl3():
    t = []
    for hw, ctr in ((2, 8), (1, 12), (4, 8), (3, 8)):
        f = np.zeros((64, 4), np.uint32)
        for l in range(64):
            o, g = l & 15, l >> 4
            for j in range(8):
                if abs(8 * g + j - ctr - o) <= hw:
                    f[l, j >> 1] |= 0x3F80 << (16 * (j & 1))
        t.append(f)
    f = np.zeros((64, 4), np.uint32)
    for l in range(64):
        col, g = l & 15, l >> 4
        for j in range(8):
            if col - (8 * g + j) + 1040 in (1027, 1028):
                f[l, j >> 1] |= 0xFFFF << (16 * (j & 1))
    t.append(f)
    return t
```

```python
import sys, warnings
warnings.filterwarnings("ignore")
from asmlib import *
from genA import *
import tables
KN = "concat_heads__spectral_gfnet__ssm_conv_s4__prompt_kernel"
HDR = open("concat_heads__spectral_gfnet__ssm_conv_s4__prompt.s.ref").read().split("; Override")[0]

def build(cfg):
    E = Emitter()
    C = Ctx(E, cfg.get("stamps", False))
    LDS = cfg.get("lds", 160 * 1024)
    E.raw(f"{KN}:")
    E("s_cmp_ge_u32 s2, 256")
    E.branch("s_cbranch_scc1", "L_exit", keep=True)
    C.stamp()
    E(f"""s_load_dwordx2 s[72:73], s[0:1], 112
s_load_dwordx4 s[64:67], s[0:1], 0
s_load_dwordx4 s[68:71], s[0:1], 16
v_and_b32 v{vLANE}, 63, v0
v_lshrrev_b32 v4, 6, v0
v_and_b32 v{vN}, 15, v0
v_readfirstlane_b32 s{sWAVE}, v4
v_lshrrev_b32 v{vG}, 4, v{vLANE}""")
    afirst = cfg.get("afirst", False)
    E("s_cmp_lt_u32 s2, 128")
    E.branch("s_cbranch_scc0" if afirst else "s_cbranch_scc1", "L_B", keep=True)
    lg0 = list(E.lg)
    E(f"""s_load_dwordx2 s[76:77], s[0:1], 96
s_and_b32 s{sWA}, s2, 127
s_and_b32 s{sCLS}, s2, 7
s_lshr_b32 s{sGQ}, s{sWA}, 3
s_add_u32 s{sAP}, s{sCLS}, 1
s_and_b32 s{sT}, s{sGQ}, 8
s_and_b32 s{sT+1}, s{sGQ}, 7
s_cmp_eq_u32 s{sCLS}, 7
s_cselect_b32 s{sAP}, s{sT}, s{sAP}
s_cselect_b32 s{sGQP}, s{sT+1}, s{sGQ}
s_getpc_b64 s[{sTB}:{sTB+1}]""")
    E.raw("L_pc:")
    E(f"""s_add_u32 s{sTB}, s{sTB}, L_table-L_pc
s_addc_u32 s{sTB+1}, s{sTB+1}, 0
s_and_b32 s{sTB+1}, s{sTB+1}, 0xffff
s_mov_b32 s{sTB+2}, 36864
s_mov_b32 s{sTB+3}, 0x00020000""")
    E.waitf(lg=0)
    E("s_load_dword s59, s[72:73], 0")
    srd(E, sX, 64, 65, 2621440)
    srd(E, sWS, 72, 73, WS_BYTES)
    srd(E, sWR, 66, 67, 2048 * 642)
    srd(E, sWI, 68, 69, 2048 * 642)
    srd(E, sOUT, 76, 77, 2048 * 2560)
    if cfg.get("A", True):
        gen_A(E, C, cfg)
    nsA = C.ns
    def dump_stamps(n):
        if not C.stamps: return
        C.stamp()
        n = C.ns
        E.waitf(vm=0, lg=0)
        E(f"""s_mul_i32 s{sT}, s2, 12
s_add_u32 s{sT}, s{sT}, s{sWAVE}
s_lshl_b32 s{sT}, s{sT}, 8
s_add_u32 s{sT}, s{sT}, {WS_DBG}
v_mov_b32 v4, 0""")
        setexec(E, 1, 0)
        for i in range(n):
            E(f"v_mov_b32 v6, s{sSTAMP+2*i}\nv_mov_b32 v7, s{sSTAMP+2*i+1}")
            E(f"buffer_store_dwordx2 v[6:7], v4, s[{sWS}:{sWS+3}], s{sT} offen offset:{8*i}")
            E.waitf(vm=0)
    dump_stamps(nsA)
    nsA = C.ns
    E.raw("    s_endpgm")
    E.dead = True
    E.label("L_B")
    C.ns = 1 if C.stamps else 0
    if cfg.get("B", True):
        import genB
        genB.gen_B(E, C, cfg)
        dump_stamps(C.ns)
    nsB = C.ns
    E.label("L_exit")
    E.raw("    s_endpgm")
    body = E.text()
    tb = tables.as_asm(tables.tbl1() + tables.tbl2() + tables.tbl3())
    s = HDR + f"; nstampsA={nsA} nstampsB={nsB}\n; @launch kernel={KN} grid=(256,1,1) block=(768,1,1) lds={LDS}\n"
    s += f""".amdgcn_target "amdgcn-amd-amdhsa--gfx950"
.text
.globl {KN}
.p2align 8
.type {KN},@function
{body}
.p2align 8
.type L_table,@object
L_table:
{tb}
.section .rodata,"a"
.p2align 6
.amdhsa_kernel {KN}
  .amdhsa_next_free_vgpr 168
  .amdhsa_next_free_sgpr 102
  .amdhsa_accum_offset 168
  .amdhsa_group_segment_fixed_size 0
  .amdhsa_kernarg_size 120
  .amdhsa_user_sgpr_count 2
  .amdhsa_user_sgpr_kernarg_segment_ptr 1
  .amdhsa_system_sgpr_workgroup_id_x 1
.end_amdhsa_kernel
"""
    return s

if __name__ == "__main__":
    cfg = {}
    for a in sys.argv[2:]:
        k, v = a.split("=")
        cfg[k] = int(v) if v.lstrip("-").isdigit() else v
    open(sys.argv[1], "w").write(build(cfg))
```
